```python
import torch

def _softmax(x, axis=-1):
    return torch.softmax(x, dim=axis)
def _gelu(x):
    return torch.nn.functional.gelu(x, approximate="tanh")
def _silu(x):
    return torch.nn.functional.silu(x)
def _sigmoid(x):
    return torch.sigmoid(x)
def _layernorm(x, axis=-1, eps=1e-5):
    m = x.mean(dim=axis, keepdim=True)
    v = x.var(dim=axis, keepdim=True, unbiased=False)
    return (x - m) / torch.sqrt(v + eps)
def _scatter_add(tgt, idx, src, axis=0):
    return tgt.clone().index_add_(axis, idx, src)
def _segment_sum(src, seg, n):
    out = torch.zeros((n,) + src.shape[1:], dtype=src.dtype)
    return out.index_add_(0, seg, src)
def _pad(x, pw):
    flat = tuple(v for pair in reversed(pw) for v in pair)
    return torch.nn.functional.pad(x, flat)

kernel_name = 'parallel_sum__gqa_block_cached__glu_gated_reglu__decode'

def setup_inputs():

    _w = (lambda a: (lambda t: t.to(torch.bfloat16) if t.is_floating_point() else t)(torch.as_tensor(a)))
    def _A_setup():
        B, Sq, D = 1, 1, 448
        Hq, Hkv, Sk, Dh = 16, 8, 65536, 256
        assert Hq % Hkv == 0, (Hq, Hkv)
        return {
            "x": _w((lambda *s: torch.randn(*s, dtype=torch.bfloat16) * 0.05)(B, Sq, D)),
            "k_cache": _w((lambda *s: torch.randn(*s, dtype=torch.bfloat16) * 3.2)(B, Hkv, Sk, Dh)),
            "v_cache": _w((lambda *s: torch.randn(*s, dtype=torch.bfloat16) * 1.6)(B, Hkv, Sk, Dh)),
            "wq": _w((lambda *s: torch.randn(*s, dtype=torch.bfloat16) * 3.2)(D, Hq * Dh) * (D ** -0.5)),
            "wo": _w((lambda *s: torch.randn(*s, dtype=torch.bfloat16) * 1.6)(Hq * Dh, D) * ((Hq * Dh) ** -0.5)),
        }
    _A_in = _A_setup()

    def _B_setup():
        B, S, D, F = 1, 1, 448, 1792
        return {
            "x": _w((lambda *s: torch.randn(*s, dtype=torch.bfloat16) * 0.05)(B, S, D)),
            "W_gate": _w((lambda *s: torch.randn(*s, dtype=torch.bfloat16) * 1.6)(D, F) * (2.0 / D) ** 0.5),
            "W_up": _w((lambda *s: torch.randn(*s, dtype=torch.bfloat16) * 1.6)(D, F) * (2.0 / D) ** 0.5),
            "W_down": _w((lambda *s: torch.randn(*s, dtype=torch.bfloat16) * 1.6)(F, D) * (1.0 / F) ** 0.5),
        }
    _B_in = _B_setup()

    return {
        "A_x": _A_in["x"],
        "A_k_cache": _A_in["k_cache"],
        "A_v_cache": _A_in["v_cache"],
        "A_wq": _A_in["wq"],
        "A_wo": _A_in["wo"],
        "B_x": _B_in["x"],
        "B_W_gate": _B_in["W_gate"],
        "B_W_up": _B_in["W_up"],
        "B_W_down": _B_in["W_down"],
    }

def reference(A_x, A_k_cache, A_v_cache, A_wq, A_wo, B_x, B_W_gate, B_W_up, B_W_down):
    def _A_ref(x, k_cache, v_cache, wq, wo):
        B, Sq, D = x.shape
        Hq, Dh = 16, 256
        Hkv = k_cache.shape[1]
        rep = Hq // Hkv
        q = (lambda x, *d: x.permute(*d))((x @ wq).reshape(B, Sq, Hq, Dh), 0, 2, 1, 3)
        k = (lambda x, n, axis: torch.repeat_interleave(x, n, dim=axis))(k_cache, rep, axis=1)
        v = (lambda x, n, axis: torch.repeat_interleave(x, n, dim=axis))(v_cache, rep, axis=1)
        scores = torch.einsum("bhqd,bhkd->bhqk", q, k) * (Dh ** -0.5)
        p = _softmax(scores, axis=-1)
        o = torch.einsum("bhqk,bhkd->bhqd", p, v)
        return (lambda x, *d: x.permute(*d))(o, 0, 2, 1, 3).reshape(B, Sq, Hq * Dh) @ wo

    def _B_ref(x, W_gate, W_up, W_down):
        gate = torch.einsum("bsd,df->bsf", x, W_gate)
        up = torch.einsum("bsd,df->bsf", x, W_up)
        gate = gate * (lambda x, dt: x.to(dt))(gate > 0, gate.dtype)
        h = gate * up
        return torch.einsum("bsf,fd->bsd", h, W_down)

    x = A_x
    xn = _layernorm(x, axis=-1)
    return x + _A_ref(xn, A_k_cache, A_v_cache, A_wq, A_wo) + _B_ref(xn, B_W_gate, B_W_up, B_W_down)
```

```python
import sys, json
NAME = "parallel_sum__gqa_block_cached__glu_gated_reglu__decode"
HEADER = open("cdna_kernels/%s.s.ref" % NAME).read().split("; Override launch geometry")[0]

NWG = 256
NWK = 4
NW = NWK + 1
Q_OFF = 0x0
CTR_OFF = 0x4000
F1_OFF = 0x8000
F2_OFF = 0x8800
REC_OFF = 0x10000
REC_STRIDE = 4096
YP_OFF = 0x110000
YP_STRIDE = 1792
ST_OFF = 0x200000
WS_SIZE = 0x400000
L_CNT = 0
L_TBL = 64
L_XD = 5376
L_Q = 7168
L_HD = 8192
L_P = 8448
L_P2 = L_P + 8192
L_M = L_P2 + 8192
L_R = L_M + 4 * 2304
LDS_SIZE = L_R + 64
CEXP = 0.09016844005556021
import struct
def f2u(f): return struct.unpack("<I", struct.pack("<f", f))[0]

NSTAT = 3
SPR = 4 * NWK * NSTAT
BT = 4

class Gen:
    def __init__(self, RS=1, stamps=False, lead=1, Q=1):
        self.L = []
        self.RS = RS; self.stamps = stamps; self.lead = lead; self.Q = Q
        self.uid = 0
    def A(self, s): self.L.append("  " + s)
    def C(self, s): self.L.append("  ; " + s)
    def label(self, s): self.L.append(s + ":")
    def nop(self, n):
        while n > 0:
            k = min(n, 16); self.A(f"s_nop {k-1}"); n -= k
    def setexec(self, m):
        if m == -1 or 0 <= m <= 64:
            self.A(f"s_mov_b64 exec, {m}")
        else:
            self.A(f"s_mov_b32 exec_lo, {hex(m & 0xffffffff)}")
            self.A(f"s_mov_b32 exec_hi, {hex(m >> 32)}")
    def new(self, p):
        self.uid += 1
        return f"L_{p}_{self.uid}"
    def stamp(self, k):
        if not self.stamps: return
        A = self.A
        A("s_memrealtime s[90:91]")
        A("s_waitcnt lgkmcnt(0)")
        A(f"v_writelane_b32 v250, s90, {2*k}")
        A(f"v_writelane_b32 v250, s91, {2*k+1}")
    def allreduce(self, op, v, tmp, steps=("q1", "q2", "hm", "rm", "p16", "p32")):
        A = self.A
        for st in steps:
            if st in ("q1", "q2", "hm", "rm", "ror4", "ror8"):
                mod = {"q1": "quad_perm:[1,0,3,2]", "q2": "quad_perm:[2,3,0,1]", "hm": "row_half_mirror", "rm": "row_mirror",
                       "ror4": "row_ror:4", "ror8": "row_ror:8"}[st]
                self.nop(2)
                A(f"v_{op}_f32_dpp {v}, {v}, {v} {mod} row_mask:0xf bank_mask:0xf")
            else:
                A(f"v_mov_b32 {tmp}, {v}")
                self.nop(2)
                A(f"v_permlane{'16' if st == 'p16' else '32'}_swap_b32 {tmp}, {v}")
                self.nop(1)
                A(f"v_{op}_f32 {v}, {tmp}, {v}")

    def srd(self, s, ptr, size):
        A = self.A
        A(f"s_mov_b32 s{s}, s{ptr}")
        A(f"s_and_b32 s{s+1}, s{ptr+1}, 0xffff")
        A(f"s_mov_b32 s{s+2}, {size}")
        A(f"s_mov_b32 s{s+3}, 0x00020000")

    BUF = {0: 64, 1: 128, 2: 192}
    KOFF = [(c >> 1) * 2048 + (c & 1) * 256 for c in range(8)]
    def ld_tile(self, kind, buf, sreg):
        b = self.BUF[buf] + (0 if kind == "K" else 32)
        vr = ("v4", "v5") if kind == "K" else ("v6", "v7")
        srd = "s[8:11]" if kind == "K" else "s[12:15]"
        for c in range(8):
            o = self.KOFF[c]; v = vr[0]
            if o >= 4096: o -= 4096; v = vr[1]
            self.A(f"buffer_load_dwordx4 v[{b+4*c}:{b+4*c+3}], {v}, {srd}, {sreg} offen offset:{o} nt")

    def qk(self, buf):
        b = self.BUF[buf]
        for u in range(2):
            for r in range(4):
                c = 2 * r + u
                src = "0" if u == 0 else f"v[{32+4*r}:{35+4*r}]"
                self.A(f"v_mfma_f32_16x16x32_bf16 v[{32+4*r}:{35+4*r}], v[{b+4*c}:{b+4*c+3}], v[{12+4*u}:{15+4*u}], {src}")

    def softmax(self, rare_blocks):
        A = self.A
        for r in range(4):
            A(f"v_mov_b32_dpp v{48+r}, v{32+4*r} quad_perm:[0,0,0,0] row_mask:0xf bank_mask:0xf")
        for k in range(1, 4):
            for r in range(4):
                A(f"v_add_f32_dpp v{48+r}, v{32+4*r+k}, v{48+r} quad_perm:[{k},{k},{k},{k}] row_mask:0xf bank_mask:0xf")
        A("v_cvt_pk_bf16_f32 v52, v48, v49")
        A("v_cvt_pk_bf16_f32 v53, v50, v51")
        A("v_lshlrev_b32 v48, 16, v52")
        A("v_and_b32 v49, 0xffff0000, v52")
        A("v_lshlrev_b32 v50, 16, v53")
        A("v_and_b32 v51, 0xffff0000, v53")
        A("v_max3_f32 v52, v48, v49, v50")
        A("v_max_f32 v52, v52, v51")
        A("v_cmp_gt_f32 vcc, v52, v28")
        rare = self.new("rare"); back = self.new("back")
        self.nop(1)
        A(f"s_cbranch_vccnz {rare}")
        self.label(back)
        for r in range(4):
            A(f"v_fma_f32 v{52+r}, v{48+r}, s60, -v29")
        for r in range(4):
            A(f"v_exp_f32 v{52+r}, v{52+r}")
        A("s_nop 0")
        for r in range(4):
            A(f"v_cvt_pk_bf16_f32 v{56+r}, v{52+r}, v{52+r}")
        A("v_add_f32 v52, v52, v53")
        A("v_add_f32 v54, v54, v55")
        A("v_add_f32 v30, v30, v52")
        A("v_add_f32 v30, v30, v54")
        rare_blocks.append((rare, back))

    def rare_block(self, rare, back):
        A = self.A
        self.label(rare)
        self.allreduce("max", "v52", "v53", steps=("p16", "p32"))
        A("v_max_f32 v52, v52, v28")
        A("v_sub_f32 v53, v28, v52")
        A("v_mul_f32 v53, s60, v53")
        A("v_exp_f32 v53, v53")
        A("v_mov_b32 v28, v52")
        A("v_mul_f32 v29, s60, v52")
        A("v_mul_f32 v30, v30, v53")
        A("v_readlane_b32 s62, v53, 0")
        A("v_readlane_b32 s63, v53, 8")
        self.nop(2)
        A("v_mov_b32 v54, s63")
        A("v_mov_b32 v55, s62")
        A("v_cndmask_b32 v54, v54, v55, s[64:65]")
        self.nop(3)
        for k in range(8):
            A(f"v_mul_f32 v{20+k}, v{20+k}, v54")
        self.nop(2)
        A(f"s_branch {back}")

    def pv(self, buf):
        A = self.A
        b = self.BUF[buf] + 32
        for r in range(4):
            a = 32 + 4 * (r & 1)
            for k in range(4):
                A(f"v_and_b32 v{a+k}, v{8+k}, v{56+r}")
            self.nop(2)
            for u in range(2):
                c = 2 * r + u
                A(f"v_mfma_f32_16x16x32_bf16 v[{20+4*u}:{23+4*u}], v[{a}:{a+3}], v[{b+4*c}:{b+4*c+3}], v[{20+4*u}:{23+4*u}]")

    def pop_issue(self):
        A = self.A
        self.setexec(1)
        A("ds_add_rtn_u32 v31, v60, v61")
        self.setexec(-1)
    def pop_resolve(self, endlabel):
        A = self.A
        A("s_waitcnt lgkmcnt(0)")
        A("v_readfirstlane_b32 s66, v31")
        self.nop(2)
        A("s_lshr_b32 s67, s66, 2")
        A("s_lshl_b32 s67, s67, 2")
        A(f"s_add_u32 s67, s67, {L_TBL}")
        A("v_mov_b32 v62, s67")
        spin = self.new("spin")
        self.label(spin)
        A("ds_read_b32 v31, v62")
        A("s_waitcnt lgkmcnt(0)")
        A("v_readfirstlane_b32 s68, v31")
        self.nop(2)
        A("s_cmp_eq_u32 s68, -1")
        A(f"s_cbranch_scc1 {spin}")
        A("s_and_b32 s66, s66, 3")
        A("s_add_u32 s66, s66, s68")
        A("s_cmp_ge_u32 s66, 4096")
        A(f"s_cbranch_scc1 {endlabel}")
        A("s_lshl_b32 s69, s66, 13")

    def gemv_strip(self, breg, acc, nt=14):
        A = self.A
        for t in range(nt):
            a = 48 + 4 * (t & 1)
            for k in range(4):
                A(f"v_and_b32 v{a+k}, v{8+k}, v{32+t}")
            self.nop(2)
            src = "0" if t == 0 else f"v[{acc}:{acc+3}]"
            A(f"v_mfma_f32_16x16x32_bf16 v[{acc}:{acc+3}], v[{a}:{a+3}], v[{breg+4*t}:{breg+4*t+3}], {src}")

    def worker(self):
        A = self.A; C = self.C
        self.label("L_worker")
        A("v_and_b32 v2, 15, v0")
        A("v_lshrrev_b32 v3, 4, v0")
        A("v_lshrrev_b32 v4, 2, v2")
        A("v_lshlrev_b32 v4, 9, v4")
        A("v_lshl_add_u32 v4, v3, 6, v4")
        A("v_and_b32 v1, 3, v2")
        A("v_lshl_add_u32 v4, v1, 4, v4")
        A("v_add_u32 v5, 4096, v4")
        A("v_lshlrev_b32 v6, 9, v3")
        A("v_lshl_add_u32 v6, v2, 4, v6")
        A("v_add_u32 v7, 4096, v6")
        A("s_lshl_b32 s61, s6, 9")
        A("s_lshl_b32 s30, s7, 2")
        A("s_add_u32 s61, s61, s30")
        A("s_add_u32 s61, s61, s3")
        A("s_lshl_b32 s61, s61, 13")
        A(f"s_add_u32 s70, s61, {16*8192}")
        A(f"s_add_u32 s71, s61, {32*8192}")
        A("s_cmp_eq_u32 s28, 0")
        A("s_cbranch_scc1 L_wroleQ")
        A("s_cmp_eq_u32 s28, 2")
        A("s_cbranch_scc1 L_wroleF")
        C("role N")
        self.ld_tile("K", 0, "s61"); self.ld_tile("V", 0, "s61")
        self.ld_tile("K", 1, "s70"); self.ld_tile("V", 1, "s70")
        self.ld_tile("K", 2, "s71"); self.ld_tile("V", 2, "s71")
        self.masks()
        A("s_branch L_waitq")

        def strip_voff(rowstride):
            A("v_lshrrev_b32 v62, 3, v0")
            A(f"s_mov_b32 s30, {rowstride}")
            A("v_mul_lo_u32 v62, v62, s30")
            A("v_and_b32 v1, 7, v0")
            A("v_lshl_add_u32 v62, v1, 4, v62")
            A(f"s_mul_i32 s30, s3, {112*rowstride}")
            A("s_lshl_b32 s31, s29, 7")
            A("s_add_u32 s30, s30, s31")
        def strip_loads(srd, breg, rowstride):
            for t in range(14):
                A(f"s_add_u32 s31, s30, {t*8*rowstride}")
                A(f"buffer_load_dwordx4 v[{breg+4*t}:{breg+4*t+3}], v62, {srd}, s31 offen")
        def xreads():
            A("v_lshrrev_b32 v63, 3, v0")
            A("v_lshlrev_b32 v63, 2, v63")
            A(f"s_mul_i32 s31, s3, 448")
            A(f"s_add_u32 s31, s31, {L_XD}")
            A("v_add_u32 v63, s31, v63")
            for t in range(14):
                A(f"ds_read_b32 v{32+t}, v63 offset:{t*32}")

        C("role Q: q strip producer")
        self.label("L_wroleQ")
        self.srd(20, 42, 448 * 8192)
        strip_voff(8192)
        strip_loads("s[20:23]", 192, 8192)
        self.ld_tile("K", 0, "s61"); self.ld_tile("V", 0, "s61")
        self.ld_tile("K", 1, "s70"); self.ld_tile("V", 1, "s70")
        self.masks()
        A("s_barrier")
        xreads()
        A("s_waitcnt vmcnt(32) lgkmcnt(0)")
        self.gemv_strip(192, 56)
        A("v_lshlrev_b32 v62, 4, v0")
        A("s_lshl_b32 s31, s3, 10")
        A(f"s_add_u32 s31, s31, {L_P}")
        A("v_add_u32 v62, s31, v62")
        self.nop(8)
        A("ds_write_b128 v62, v[56:59]")
        A("s_waitcnt lgkmcnt(0)")
        A("s_barrier")
        self.ld_tile("K", 2, "s71"); self.ld_tile("V", 2, "s71")
        A("s_branch L_waitq")

        C("role F: FFN strip")
        self.label("L_wroleF")
        self.srd(20, 48, 448 * 3584)
        self.srd(24, 50, 448 * 3584)
        strip_voff(3584)
        strip_loads("s[20:23]", 192, 3584)
        strip_loads("s[24:27]", 128, 3584)
        self.ld_tile("K", 0, "s61"); self.ld_tile("V", 0, "s61")
        self.masks()
        A("s_barrier")
        xreads()
        A("s_waitcnt vmcnt(30) lgkmcnt(0)")
        self.gemv_strip(192, 56)
        A("s_waitcnt vmcnt(16)")
        self.gemv_strip(128, 60)
        self.srd(20, 52, 1792 * 896)
        A("v_mul_u32_u24 v46, 896, v3")
        A("v_lshl_add_u32 v46, v2, 4, v46")
        A("s_lshl_b32 s30, s29, 6")
        A("s_lshl_b32 s31, s3, 4")
        A("s_add_u32 s30, s30, s31")
        A("s_mul_i32 s30, s30, 896")
        for t in range(4):
            A(f"s_add_u32 s31, s30, {t*4*896}")
            for cb in range(4):
                b = 192 + (t * 4 + cb) * 4
                A(f"buffer_load_dwordx4 v[{b}:{b+3}], v46, s[20:23], s31 offen offset:{cb*256}")
        A("v_lshlrev_b32 v47, 4, v0")
        A("s_lshl_b32 s31, s3, 10")
        A(f"s_add_u32 s31, s31, {L_P}")
        A("v_add_u32 v47, s31, v47")
        self.nop(4)
        A("ds_write_b128 v47, v[56:59]")
        A("ds_write_b128 v47, v[60:63] offset:4096")
        A("s_waitcnt lgkmcnt(0)")
        A("s_barrier")
        A("s_barrier")
        A("v_lshlrev_b32 v63, 2, v3")
        A("s_lshl_b32 s31, s3, 6")
        A(f"s_add_u32 s31, s31, {L_HD}")
        A("v_add_u32 v63, s31, v63")
        for t in range(4):
            A(f"ds_read_b32 v{48+t}, v63 offset:{t*16}")
        A("s_waitcnt vmcnt(0) lgkmcnt(0)")
        for t in range(4):
            a = 52 + 4 * (t & 1)
            for k in range(4):
                A(f"v_and_b32 v{a+k}, v{8+k}, v{48+t}")
            self.nop(2)
            for cb in range(4):
                b = 192 + (t * 4 + cb) * 4
                src = "0" if t == 0 else f"v[{32+4*cb}:{35+4*cb}]"
                A(f"v_mfma_f32_16x16x32_bf16 v[{32+4*cb}:{35+4*cb}], v[{a}:{a+3}], v[{b}:{b+3}], {src}")
        A("v_lshlrev_b32 v62, 5, v2")
        A("v_lshl_add_u32 v62, v3, 4, v62")
        A("s_lshl_b32 s31, s3, 11")
        A(f"s_add_u32 s31, s31, {L_P2}")
        A("v_add_u32 v62, s31, v62")
        self.nop(6)
        self.setexec(0xffffffff)
        for cb in range(4):
            A(f"ds_write_b128 v62, v[{32+4*cb}:{35+4*cb}] offset:{cb*512}")
        self.setexec(-1)
        A("s_waitcnt lgkmcnt(0)")
        A("s_barrier")
        self.ld_tile("K", 1, "s70"); self.ld_tile("V", 1, "s70")
        self.ld_tile("K", 2, "s71"); self.ld_tile("V", 2, "s71")

        self.label("L_waitq")
        A("s_barrier")
        A("v_lshrrev_b32 v62, 3, v2")
        A("v_lshlrev_b32 v62, 9, v62")
        A("v_lshl_add_u32 v62, v3, 6, v62")
        A("v_and_b32 v1, 3, v2")
        A("v_lshl_add_u32 v62, v1, 4, v62")
        A(f"ds_read_b128 v[12:15], v62 offset:{L_Q}")
        A(f"ds_read_b128 v[16:19], v62 offset:{L_Q+256}")
        for k in range(8):
            A(f"v_mov_b32 v{20+k}, 0")
        A("v_mov_b32 v28, 0xff800000")
        A("v_mov_b32 v29, 0xff800000")
        A("v_mov_b32 v30, 0")
        A(f"v_mov_b32 v60, {L_CNT}")
        A("v_mov_b32 v61, 1")
        A("s_mov_b32 s64, -1")
        A("s_mov_b32 s65, 0")
        A("s_waitcnt lgkmcnt(0)")
        rare = []
        drains = []
        Q = [("K", 0, 0), ("V", 0, 0), ("K", 1, 1), ("V", 1, 1), ("K", 2, 2), ("V", 2, 2)]
        def wait(kind, item):
            idx = [i for i, q in enumerate(Q) if q[0] == kind and q[1] == item][0]
            after = len(Q) - idx - 1
            A(f"s_waitcnt vmcnt({8*after})")
            del Q[:idx + 1]
        def process(item, buf, refill, nxt):
            if refill: self.pop_issue()
            wait("K", item)
            self.qk(buf)
            if refill:
                d = self.new("drain")
                drains.append((d, item, buf, list(Q)))
                self.pop_resolve(d)
                self.ld_tile("K", buf, "s69"); Q.append(("K", nxt, buf))
            else:
                self.nop(8)
            self.softmax(rare)
            wait("V", item)
            self.pv(buf)
            if refill:
                self.ld_tile("V", buf, "s69"); Q.append(("V", nxt, buf))
        RS = self.RS
        nxt = 3
        for n in range(3):
            rf = n < RS
            process(n, n, rf, nxt)
            if rf: nxt += 1
        Q0 = [(k, it - 3, b) for (k, it, b) in Q]
        self.label("L_loop")
        Q[:] = list(Q0)
        for n in range(RS):
            process(n, n, True, n + RS)
        Q1 = [(k, it - RS, b) for (k, it, b) in Q]
        assert Q1 == Q0, (Q0, Q1)
        A("s_branch L_loop")
        for (d, item, buf, q) in drains:
            self.label(d)
            Q[:] = list(q)
            self.nop(8)
            self.softmax(rare)
            wait("V", item)
            self.pv(buf)
            rest = sorted(set((it, b) for (k, it, b) in Q))
            for (it, b) in rest:
                wait("K", it)
                self.qk(b)
                self.nop(8)
                self.softmax(rare)
                wait("V", it)
                self.pv(b)
            A("s_branch L_wfin")
        for (r, b) in rare:
            self.rare_block(r, b)
        self.label("L_wfin")
        self.allreduce("add", "v30", "v31", steps=("p16", "p32"))
        A("v_lshrrev_b32 v62, 1, v3")
        A("v_lshlrev_b32 v62, 10, v62")
        A("v_lshl_add_u32 v62, v2, 5, v62")
        A("v_and_b32 v1, 1, v3")
        A("v_lshl_add_u32 v62, v1, 4, v62")
        A(f"s_mul_i32 s31, s3, 2304")
        A(f"s_add_u32 s31, s31, {L_M}")
        A("v_add_u32 v62, s31, v62")
        self.nop(4)
        A("ds_write_b128 v62, v[20:23]")
        A("ds_write_b128 v62, v[24:27] offset:512")
        A("v_lshrrev_b32 v63, 3, v0")
        A("v_lshlrev_b32 v63, 3, v63")
        A("v_add_u32 v63, s31, v63")
        A("v_mov_b32 v29, v30")
        self.setexec(0x101)
        A("ds_write_b64 v63, v[28:29] offset:2048")
        self.setexec(-1)
        A("s_waitcnt lgkmcnt(0)")
        A("s_barrier")
        A("s_cmp_ge_u32 s2, 112")
        A("s_cbranch_scc1 L_end")
        A("s_lshl_b32 s31, s3, 6")
        A("v_add_u32 v1, s31, v0")
        A("v_lshlrev_b32 v62, 2, v1")
        p = self.new("poll2")
        self.label(p)
        A(f"buffer_load_dword v31, v62, s[16:19], s72 offen sc1")
        A("s_waitcnt vmcnt(0)")
        A("v_cmp_ne_u32 vcc, 1, v31")
        self.nop(1)
        pd = self.new("poll2d")
        A(f"s_cbranch_vccz {pd}")
        A("s_sleep 1")
        A(f"s_branch {p}")
        self.label(pd)
        A(f"v_mul_u32_u24 v62, {YP_STRIDE}, v1")
        A("s_lshl_b32 s31, s2, 4")
        A(f"s_add_u32 s31, s31, {YP_OFF}")
        A("buffer_load_dwordx4 v[32:35], v62, s[16:19], s31 offen sc1")
        A("s_waitcnt vmcnt(0)")
        for k in range(4):
            self.allreduce("add", f"v{32+k}", "v36")
        A("s_lshl_b32 s31, s3, 4")
        A(f"s_add_u32 s31, s31, {L_R}")
        A("v_mov_b32 v62, s31")
        self.setexec(1)
        A("ds_write_b128 v62, v[32:35]")
        self.setexec(-1)
        A("s_waitcnt lgkmcnt(0)")
        A("s_barrier")
        A("s_branch L_end")

    def masks(self):
        A = self.A
        A("v_and_b32 v1, 1, v0")
        A("v_lshlrev_b32 v1, 4, v1")
        A("v_mov_b32 v31, 0xffff")
        A("v_lshlrev_b32 v31, v1, v31")
        A("v_bfe_u32 v1, v0, 1, 2")
        for k in range(4):
            A(f"v_cmp_eq_u32 vcc, {k}, v1")
            self.nop(2)
            A(f"v_cndmask_b32 v{8+k}, 0, v31, vcc")

    def bf16r(self, v, tmp=None):
        self.A(f"v_cvt_pk_bf16_f32 {v}, {v}, {v}")
        self.A(f"v_and_b32 {v}, 0xffff0000, {v}")

    def control(self):
        A = self.A; C = self.C
        self.label("L_control")
        self.stamp(0)
        self.srd(20, 36, 896)
        A("v_lshlrev_b32 v1, 4, v0")
        A("buffer_load_dwordx4 v[8:11], v1, s[20:23], 0 offen")
        A("v_mov_b32 v4, -1"); A("v_mov_b32 v5, -1"); A("v_mov_b32 v6, -1"); A("v_mov_b32 v7, -1")
        for k in range(5):
            A(f"ds_write_b128 v1, v[4:7] offset:{L_TBL + k*1024}")
        A("v_mov_b32 v2, 0")
        A(f"ds_write_b32 v2, v2 offset:{L_CNT}")
        self.srd(24, 56, 256)
        A("s_cmp_eq_u32 s28, 1")
        A("s_cbranch_scc1 L_cpollq")
        A("s_cmp_eq_u32 s28, 2")
        A("s_cbranch_scc1 L_cln")
        C("role Q: zero flags / counters")
        A("v_lshlrev_b32 v3, 2, v0")
        A("s_lshl_b32 s30, s29, 4")
        A(f"s_add_u32 s31, s30, {F1_OFF}")
        self.setexec(0xf)
        A("buffer_store_dword v2, v3, s[16:19], s31 offen sc1")
        A(f"s_add_u32 s31, s30, {F2_OFF}")
        A("buffer_store_dword v2, v3, s[16:19], s31 offen sc1")
        self.setexec(1)
        A("s_lshl_b32 s30, s29, 2")
        A(f"s_add_u32 s31, s30, {F2_OFF + 1024}")
        A("s_cmp_ge_u32 s29, 28")
        z1 = self.new("z")
        A(f"s_cbranch_scc1 {z1}")
        A("buffer_store_dword v2, v3, s[16:19], s31 offen sc1")
        self.label(z1)
        A("s_and_b32 s30, s29, 7")
        A("s_cmp_lg_u32 s30, 0")
        z2 = self.new("z")
        A(f"s_cbranch_scc1 {z2}")
        self.setexec(0xff)
        A("v_lshlrev_b32 v3, 8, v0")
        A("s_lshl_b32 s30, s29, 8")
        A(f"s_add_u32 s31, s30, {CTR_OFF}")
        A("buffer_store_dword v2, v3, s[16:19], s31 offen sc1")
        self.label(z2)
        self.setexec(-1)
        C("layernorm")
        self.label("L_cln")
        A("s_waitcnt vmcnt(0)")
        for k in range(4):
            A(f"v_lshlrev_b32 v{12+2*k}, 16, v{8+k}")
            A(f"v_and_b32 v{13+2*k}, 0xffff0000, v{8+k}")
        A("v_add_f32 v20, v12, v13")
        for k in range(2, 8):
            A(f"v_add_f32 v20, v20, v{12+k}")
        self.allreduce("add", "v20", "v21")
        A(f"v_mul_f32 v20, {hex(f2u(1.0/448.0))}, v20")
        A("v_cmp_gt_u32 vcc, 56, v0")
        A("v_mov_b32 v22, 0")
        for k in range(8):
            A(f"v_sub_f32 v23, v{12+k}, v20")
            A("v_fmac_f32 v22, v23, v23")
        A("v_cndmask_b32 v22, 0, v22, vcc")
        self.allreduce("add", "v22", "v21")
        A(f"v_mul_f32 v22, {hex(f2u(1.0/448.0))}, v22")
        self.bf16r("v22")
        self.bf16r("v20")
        A(f"v_add_f32 v22, {hex(f2u(1e-5))}, v22")
        self.bf16r("v22")
        A("v_sqrt_f32 v22, v22")
        A("s_nop 0")
        self.bf16r("v22")
        A("v_rcp_f32 v23, v22")
        A("s_nop 0")
        for k in range(8):
            A(f"v_sub_f32 v{12+k}, v{12+k}, v20")
            self.bf16r(f"v{12+k}")
            A(f"v_mul_f32 v24, v{12+k}, v23")
            A(f"v_fma_f32 v25, -v24, v22, v{12+k}")
            A(f"v_fma_f32 v24, v25, v23, v24")
            A(f"v_cvt_pk_bf16_f32 v{12+k}, v24, v24")
        A("v_lshlrev_b32 v26, 5, v0")
        self.setexec(0x00ffffffffffffff)
        A(f"ds_write_b128 v26, v[12:15] offset:{L_XD}")
        A(f"ds_write_b128 v26, v[16:19] offset:{L_XD+16}")
        self.setexec(-1)
        A("s_waitcnt lgkmcnt(0)")
        A("s_barrier")
        self.stamp(1)
        A("s_barrier")
        A("v_and_b32 v2, 7, v0")
        A("v_bfe_u32 v3, v0, 3, 1")
        A("v_lshl_add_u32 v2, v3, 4, v2")
        A("v_lshlrev_b32 v2, 4, v2")
        def red(base, dst):
            for w in range(4):
                A(f"ds_read_b128 v[{32+8*w}:{35+8*w}], v2 offset:{base + w*1024}")
                A(f"ds_read_b128 v[{36+8*w}:{39+8*w}], v2 offset:{base + w*1024 + 640}")
            A("s_waitcnt lgkmcnt(0)")
            for k in range(4):
                A(f"v_add_f32 v{dst+k}, v{32+k}, v{36+k}")
                for w in range(1, 4):
                    A(f"v_add_f32 v{dst+k}, v{dst+k}, v{32+8*w+k}")
                    A(f"v_add_f32 v{dst+k}, v{dst+k}, v{36+8*w+k}")
        A("s_cmp_eq_u32 s28, 2")
        A("s_cbranch_scc1 L_cffn")
        red(L_P, 12)
        A("v_cvt_pk_bf16_f32 v12, v12, v13")
        A("v_cvt_pk_bf16_f32 v13, v14, v15")
        A("v_and_b32 v2, 7, v0")
        A("v_lshlrev_b32 v2, 4, v2")
        A("v_lshl_add_u32 v2, v3, 3, v2")
        A("s_lshl_b32 s31, s29, 7")
        self.setexec(0xffff)
        A("buffer_store_dwordx2 v[12:13], v2, s[16:19], s31 offen sc1")
        self.setexec(1)
        A("s_waitcnt vmcnt(0)")
        A("v_mov_b32 v4, 1")
        A("s_lshl_b32 s31, s29, 2")
        A("v_mov_b32 v5, s31")
        A("buffer_store_dword v4, v5, s[24:27], 0 offen sc1")
        self.setexec(-1)
        self.stamp(2)
        A("s_branch L_cpollq")
        C("FFN: h")
        self.label("L_cffn")
        red(L_P, 12)
        red(L_P + 4096, 16)
        for k in range(4):
            self.bf16r(f"v{12+k}")
            self.bf16r(f"v{16+k}")
            A(f"v_max_f32 v{12+k}, 0, v{12+k}")
            A(f"v_mul_f32 v{12+k}, v{12+k}, v{16+k}")
            A(f"v_cvt_pk_bf16_f32 v{12+k}, v{12+k}, v{12+k}")
        A("v_and_b32 v2, 7, v0")
        A("v_lshlrev_b32 v2, 5, v2")
        A("v_lshl_add_u32 v2, v3, 4, v2")
        self.setexec(0xffff)
        A(f"ds_write_b128 v2, v[12:15] offset:{L_HD}")
        self.setexec(-1)
        A("s_waitcnt lgkmcnt(0)")
        A("s_barrier")
        A("s_barrier")
        A("v_lshlrev_b32 v2, 4, v0")
        A(f"s_add_u32 s31, s29, 256")
        A(f"s_mul_i32 s31, s31, {YP_STRIDE}")
        A(f"s_add_u32 s31, s31, {YP_OFF}")
        for half in range(2):
            for w in range(4):
                A(f"ds_read_b128 v[{32+4*w}:{35+4*w}], v2 offset:{L_P2 + w*2048 + half*1024}")
            A("s_waitcnt lgkmcnt(0)")
            for k in range(4):
                A(f"v_add_f32 v{12+k}, v{32+k}, v{36+k}")
                A(f"v_add_f32 v{16+k}, v{40+k}, v{44+k}")
                A(f"v_add_f32 v{12+k}, v{12+k}, v{16+k}")
            if half == 1:
                self.setexec(0x0000ffffffffffff)
            A(f"buffer_store_dwordx4 v[12:15], v2, s[16:19], s31 offen offset:{half*1024} sc1")
            self.nop(2)
        self.setexec(-1)
        C("poll q flags")
        self.label("L_cpollq")
        A("v_lshlrev_b32 v2, 2, v0")
        p = self.new("pollq"); pd = self.new("pollqd")
        self.label(p)
        A("buffer_load_dword v3, v2, s[24:27], 0 offen sc1")
        A("s_waitcnt vmcnt(0)")
        A("v_cmp_ne_u32 vcc, 1, v3")
        self.nop(1)
        A(f"s_cbranch_vccz {pd}")
        A("s_sleep 1")
        A(f"s_branch {p}")
        self.label(pd)
        self.stamp(3)
        A("v_lshlrev_b32 v2, 4, v0")
        A("s_lshl_b32 s31, s4, 10")
        A("buffer_load_dwordx4 v[4:7], v2, s[16:19], s31 offen sc1")
        A("s_cmp_lg_u32 s28, 2")
        f1 = self.new("f")
        A(f"s_cbranch_scc1 {f1}")
        A("v_mov_b32 v8, 1")
        A("s_lshl_b32 s31, s29, 2")
        A(f"s_add_u32 s31, s31, {F2_OFF + 1024}")
        A("v_mov_b32 v9, s31")
        self.setexec(1)
        A("buffer_store_dword v8, v9, s[16:19], 0 offen sc1")
        self.setexec(-1)
        self.label(f1)
        A("s_waitcnt vmcnt(0)")
        A(f"ds_write_b128 v2, v[4:7] offset:{L_Q}")
        A("s_waitcnt lgkmcnt(0)")
        A("s_barrier")
        self.stamp(4)
        self.srd(20, 44, 4096 * 896)
        A("v_and_b32 v2, 15, v0")
        A("v_lshrrev_b32 v3, 4, v0")
        A("v_mul_u32_u24 v4, 896, v3")
        A("v_lshl_add_u32 v4, v2, 4, v4")
        A("s_lshl_b32 s30, s2, 4")
        A("s_mul_i32 s30, s30, 896")
        for t in range(4):
            A(f"s_add_u32 s31, s30, {t*4*896}")
            for cb in range(4):
                b = 128 + (t * 4 + cb) * 4
                A(f"buffer_load_dwordx4 v[{b}:{b+3}], v4, s[20:23], s31 offen offset:{cb*256}")
        self.masks()
        C("ticket loop")
        A("s_mov_b32 s66, 0")
        A("s_mov_b32 s67, s6")
        A(f"v_mov_b32 v12, {BT}")
        A(f"v_mov_b32 v13, {L_CNT}")
        A("s_lshl_b32 s68, s4, 11")
        A(f"s_add_u32 s68, s68, {CTR_OFF}")
        self.label("L_floop")
        A(f"s_cmp_lt_u32 s66, {self.Q}")
        A("s_cbranch_scc1 L_fgo")
        A(f"s_sub_u32 s69, s66, {self.Q}")
        A("s_lshl_b32 s69, s69, 2")
        A(f"s_add_u32 s69, s69, {self.lead}")
        self.label("L_fwait")
        A("ds_read_b32 v14, v13")
        A("s_waitcnt lgkmcnt(0)")
        A("v_readfirstlane_b32 s70, v14")
        self.nop(2)
        A("s_cmp_ge_u32 s70, s69")
        A("s_cbranch_scc1 L_fgo")
        A("s_sleep 2")
        A("s_branch L_fwait")
        self.label("L_fgo")
        A("s_lshl_b32 s71, s67, 8")
        A("v_mov_b32 v15, s71")
        self.setexec(1)
        A("buffer_atomic_add v12, v15, s[16:19], s68 offen sc0 sc1")
        A("s_waitcnt vmcnt(0)")
        A("v_readfirstlane_b32 s70, v12")
        A(f"v_mov_b32 v12, {BT}")
        self.setexec(-1)
        self.nop(2)
        A(f"s_add_u32 s70, s70, {SPR}")
        A("s_cmp_lt_u32 s70, 512")
        A("s_cbranch_scc1 L_fgot")
        A("v_lshlrev_b32 v15, 8, v0")
        self.setexec(0xff)
        A("buffer_load_dword v14, v15, s[16:19], s68 offen sc1")
        A("s_waitcnt vmcnt(0)")
        A(f"v_cmp_gt_u32 vcc, {512 - SPR}, v14")
        self.setexec(-1)
        self.nop(2)
        A("s_and_b32 s71, vcc_lo, 0xff")
        A("s_cmp_eq_u32 s71, 0")
        A("s_cbranch_scc1 L_fend")
        A("s_lshl_b32 s73, s71, 8")
        A("s_or_b32 s73, s73, s71")
        A("s_add_u32 s74, s67, 1")
        A("s_lshr_b32 s73, s73, s74")
        A("s_ff1_i32_b32 s73, s73")
        A("s_add_u32 s67, s74, s73")
        A("s_and_b32 s67, s67, 7")
        A("s_branch L_fgo")
        self.label("L_fend")
        A("s_mov_b32 s70, 4096")
        A("s_branch L_fwr")
        self.label("L_fgot")
        A("s_lshl_b32 s71, s67, 9")
        A("s_add_u32 s70, s70, s71")
        self.label("L_fwr")
        A("s_lshl_b32 s69, s66, 2")
        A(f"s_add_u32 s69, s69, {L_TBL}")
        A("v_mov_b32 v14, s70")
        A("v_mov_b32 v15, s69")
        self.setexec(1)
        A("ds_write_b32 v15, v14")
        self.setexec(-1)
        A("s_add_u32 s66, s66, 1")
        A("s_cmp_lt_u32 s70, 4096")
        A("s_cbranch_scc1 L_floop")
        self.stamp(5)
        C("FFN part of hop 2 (wg < 112) : sum 28 partials for columns 4b..4b+3, plus x")
        A("s_cmp_ge_u32 s2, 112")
        A("s_cbranch_scc1 L_cbt1")
        A("v_lshlrev_b32 v2, 2, v0")
        p = self.new("pollf"); pd = self.new("pollfd")
        self.setexec(0xfffffff)
        self.label(p)
        A(f"buffer_load_dword v3, v2, s[16:19], s72 offen offset:1024 sc1")
        A("s_waitcnt vmcnt(0)")
        A("v_cmp_ne_u32 vcc, 1, v3")
        self.nop(1)
        A(f"s_cbranch_vccz {pd}")
        A("s_sleep 1")
        A(f"s_branch {p}")
        self.label(pd)
        self.setexec(-1)
        for k in range(4):
            A(f"v_mov_b32 v{100+k}, 0")
        A(f"v_mul_u32_u24 v2, {YP_STRIDE}, v0")
        A("s_lshl_b32 s31, s2, 4")
        A(f"s_add_u32 s31, s31, {YP_OFF + 256*YP_STRIDE}")
        self.setexec(0xfffffff)
        A("buffer_load_dwordx4 v[100:103], v2, s[16:19], s31 offen sc1")
        self.setexec(-1)
        self.srd(20, 36, 896)
        A("s_lshl_b32 s31, s2, 3")
        A("v_mov_b32 v2, 0")
        A("buffer_load_dwordx2 v[104:105], v2, s[20:23], s31 offen")
        A("s_waitcnt vmcnt(0)")
        for k in range(4):
            self.allreduce("add", f"v{100+k}", "v106")
            self.bf16r(f"v{100+k}")
        self.label("L_cbt1")
        A("s_waitcnt lgkmcnt(0)")
        A("s_barrier")
        self.stamp(6)
        C("merge 4 waves")
        A(f"v_mov_b32 v2, {L_M + 2048}")
        for w in range(4):
            A(f"ds_read_b128 v[{32+4*w}:{35+4*w}], v2 offset:{w*2304}")
        A("v_lshlrev_b32 v3, 4, v0")
        for w in range(4):
            for h in range(2):
                b = 64 + (w * 2 + h) * 4
                A(f"ds_read_b128 v[{b}:{b+3}], v3 offset:{L_M + w*2304 + h*1024}")
        A("s_waitcnt lgkmcnt(8)")
        for h in range(2):
            m = lambda w: f"v{32+4*w+2*h}"
            l = lambda w: f"v{33+4*w+2*h}"
            M = f"v{48+2*h}"; Lr = f"v{49+2*h}"
            A(f"v_max3_f32 {M}, {m(0)}, {m(1)}, {m(2)}")
            A(f"v_max_f32 {M}, {M}, {m(3)}")
            for w in range(4):
                A(f"v_sub_f32 {m(w)}, {m(w)}, {M}")
                A(f"v_mul_f32 {m(w)}, s60, {m(w)}")
                A(f"v_exp_f32 {m(w)}, {m(w)}")
            A("s_nop 0")
            A(f"v_mul_f32 {Lr}, {m(0)}, {l(0)}")
            for w in range(1, 4):
                A(f"v_fmac_f32 {Lr}, {m(w)}, {l(w)}")
        A("s_waitcnt lgkmcnt(0)")
        for h in range(2):
            for k in range(4):
                d = 52 + 4 * h + k
                A(f"v_mul_f32 v{d}, v{32+2*h}, v{64 + h*4 + k}")
                for w in range(1, 4):
                    A(f"v_fmac_f32 v{d}, v{32+4*w+2*h}, v{64 + (w*2+h)*4 + k}")
        A(f"s_mul_i32 s31, s2, {REC_STRIDE}")
        A(f"s_add_u32 s31, s31, {REC_OFF}")
        A("buffer_store_dwordx4 v[52:55], v3, s[16:19], s31 offen sc1")
        A("buffer_store_dwordx4 v[56:59], v3, s[16:19], s31 offen offset:1024 sc1")
        A("v_mov_b32 v2, 0")
        self.setexec(1)
        A("buffer_store_dwordx4 v[48:51], v2, s[16:19], s31 offen offset:2048 sc1")
        A("s_waitcnt vmcnt(0)")
        A("v_mov_b32 v4, 1")
        A("s_lshl_b32 s31, s2, 2")
        A(f"s_add_u32 s31, s31, {F1_OFF}")
        A("v_mov_b32 v5, s31")
        A("buffer_store_dword v4, v5, s[16:19], 0 offen sc1")
        self.setexec(-1)
        self.stamp(7)
        C("hop 1: poll 32 flags of the group")
        A("v_lshlrev_b32 v2, 2, v0")
        A("s_lshl_b32 s31, s4, 7")
        A(f"s_add_u32 s31, s31, {F1_OFF}")
        p = self.new("poll1"); pd = self.new("poll1d")
        self.setexec(0xffffffff)
        self.label(p)
        A("buffer_load_dword v3, v2, s[16:19], s31 offen sc1")
        A("s_waitcnt vmcnt(0)")
        A("v_cmp_ne_u32 vcc, 1, v3")
        self.nop(1)
        A(f"s_cbranch_vccz {pd}")
        A("s_sleep 1")
        A(f"s_branch {p}")
        self.label(pd)
        self.setexec(-1)
        self.stamp(8)
        A("v_lshrrev_b32 v2, 2, v0")
        A(f"v_lshlrev_b32 v2, 12, v2")
        A("v_and_b32 v3, 3, v0")
        A("v_lshl_add_u32 v4, v3, 4, v2")
        A("s_lshl_b32 s30, s4, 17")
        A(f"s_add_u32 s30, s30, {REC_OFF}")
        A("s_lshl_b32 s31, s5, 6")
        A("s_add_u32 s31, s31, s30")
        A("s_add_u32 s73, s31, 0x10000")
        A("buffer_load_dwordx4 v[32:35], v4, s[16:19], s31 offen sc1")
        A("buffer_load_dwordx4 v[36:39], v4, s[16:19], s73 offen sc1")
        A("s_lshr_b32 s74, s5, 4")
        A("s_lshl_b32 s74, s74, 3")
        A("s_add_u32 s74, s74, s30")
        A("s_add_u32 s75, s74, 0x10000")
        A("buffer_load_dwordx2 v[40:41], v2, s[16:19], s74 offen offset:2048 sc1")
        A("buffer_load_dwordx2 v[42:43], v2, s[16:19], s75 offen offset:2048 sc1")
        A("s_waitcnt vmcnt(0)")
        A("v_max_f32 v44, v40, v42")
        self.allreduce("max", "v44", "v45", steps=("ror4", "ror8", "p16", "p32"))
        A("v_sub_f32 v40, v40, v44"); A("v_sub_f32 v42, v42, v44")
        A("v_mul_f32 v40, s60, v40"); A("v_mul_f32 v42, s60, v42")
        A("v_exp_f32 v40, v40"); A("v_exp_f32 v42, v42")
        A("s_nop 0")
        A("v_mul_f32 v41, v40, v41")
        A("v_fmac_f32 v41, v42, v43")
        for k in range(4):
            A(f"v_mul_f32 v{32+k}, v40, v{32+k}")
            A(f"v_fmac_f32 v{32+k}, v42, v{36+k}")
        for r in ("v41", "v32", "v33", "v34", "v35"):
            self.allreduce("add", r, "v45", steps=("ror4", "ror8", "p16", "p32"))
        A("v_rcp_f32 v45, v41")
        A("s_nop 0")
        for k in range(4):
            A(f"v_mul_f32 v46, v{32+k}, v45")
            A(f"v_fma_f32 v47, -v46, v41, v{32+k}")
            A(f"v_fma_f32 v{32+k}, v47, v45, v46")
        A("v_lshrrev_b32 v3, 4, v0")
        A("v_cmp_eq_u32 vcc, 1, v3"); self.nop(2)
        A("v_cndmask_b32 v32, v32, v33, vcc")
        A("v_cmp_eq_u32 vcc, 2, v3"); self.nop(2)
        A("v_cndmask_b32 v32, v32, v34, vcc")
        A("v_cmp_eq_u32 vcc, 3, v3"); self.nop(2)
        A("v_cndmask_b32 v32, v32, v35, vcc")
        A("v_cvt_pk_bf16_f32 v32, v32, v32")
        self.nop(2)
        for t in range(4):
            A(f"v_mov_b32_dpp v{40+t}, v32 quad_perm:[{t},{t},{t},{t}] row_mask:0xf bank_mask:0xf")
        for t in range(4):
            a = 44 + 4 * (t & 1)
            for k in range(4):
                A(f"v_and_b32 v{a+k}, v{8+k}, v{40+t}")
            self.nop(2)
            for cb in range(4):
                b = 128 + (t * 4 + cb) * 4
                src = "0" if t == 0 else f"v[{64+4*cb}:{67+4*cb}]"
                A(f"v_mfma_f32_16x16x32_bf16 v[{64+4*cb}:{67+4*cb}], v[{a}:{a+3}], v[{b}:{b+3}], {src}")
        A("v_and_b32 v2, 15, v0")
        A("v_lshlrev_b32 v4, 5, v2")
        A("v_lshl_add_u32 v4, v3, 4, v4")
        A(f"s_mul_i32 s31, s2, {YP_STRIDE}")
        A(f"s_add_u32 s31, s31, {YP_OFF}")
        self.nop(6)
        self.setexec(0xffffffff)
        for cb in range(3):
            A(f"buffer_store_dwordx4 v[{64+4*cb}:{67+4*cb}], v4, s[16:19], s31 offen offset:{cb*512} sc1")
        self.setexec(0x00ff00ff)
        A(f"buffer_store_dwordx4 v[76:79], v4, s[16:19], s31 offen offset:1536 sc1")
        self.setexec(1)
        A("s_waitcnt vmcnt(0)")
        A("v_mov_b32 v4, 1")
        A("s_lshl_b32 s31, s2, 2")
        A(f"s_add_u32 s31, s31, {F2_OFF}")
        A("v_mov_b32 v5, s31")
        A("buffer_store_dword v4, v5, s[16:19], 0 offen sc1")
        self.setexec(-1)
        self.stamp(9)
        A("s_cmp_ge_u32 s2, 112")
        A("s_cbranch_scc1 L_cend")
        A("s_barrier")
        A(f"v_mov_b32 v2, {L_R}")
        for w in range(4):
            A(f"ds_read_b128 v[{32+4*w}:{35+4*w}], v2 offset:{w*16}")
        A("s_waitcnt lgkmcnt(0)")
        A("v_lshlrev_b32 v48, 16, v104"); A("v_and_b32 v49, 0xffff0000, v104")
        A("v_lshlrev_b32 v50, 16, v105"); A("v_and_b32 v51, 0xffff0000, v105")
        for k in range(4):
            A(f"v_add_f32 v{32+k}, v{32+k}, v{36+k}")
            A(f"v_add_f32 v{40+k}, v{40+k}, v{44+k}")
            A(f"v_add_f32 v{32+k}, v{32+k}, v{40+k}")
            self.bf16r(f"v{32+k}")
            A(f"v_add_f32 v{32+k}, v{48+k}, v{32+k}")
            self.bf16r(f"v{32+k}")
            A(f"v_add_f32 v{32+k}, v{32+k}, v{100+k}")
        A("v_cvt_pk_bf16_f32 v32, v32, v33")
        A("v_cvt_pk_bf16_f32 v33, v34, v35")
        self.srd(20, 54, 896)
        A("s_lshl_b32 s31, s2, 3")
        A("v_mov_b32 v2, 0")
        self.setexec(1)
        A("buffer_store_dwordx2 v[32:33], v2, s[20:23], s31 offen")
        self.setexec(-1)
        self.stamp(10)
        self.label("L_cend")
        if self.stamps:
            A("v_lshlrev_b32 v2, 2, v0")
            A("s_lshl_b32 s31, s2, 8")
            A(f"s_add_u32 s31, s31, {ST_OFF}")
            A("buffer_store_dword v250, v2, s[16:19], s31 offen")
        A("s_branch L_end")

    def build(self):
        A = self.A
        L = self.L
        L.append(HEADER.rstrip())
        L.append(f"; @launch grid=({NWG},1,1) block=({NW*64},1,1) lds={LDS_SIZE}")
        L.append('.amdgcn_target "amdgcn-amd-amdhsa--gfx950"')
        L.append(".text")
        L.append(f".globl {NAME}_kernel")
        L.append(".p2align 8")
        L.append(f".type {NAME}_kernel,@function")
        L.append(f"{NAME}_kernel:")
        A(f"s_cmp_ge_u32 s2, {NWG}")
        A("s_cbranch_scc1 L_end")
        A("s_load_dwordx16 s[36:51], s[0:1], 0")
        A("s_load_dwordx8 s[52:59], s[0:1], 64")
        A("v_lshrrev_b32 v1, 6, v0")
        A("v_and_b32 v0, 63, v0")
        A("s_lshr_b32 s4, s2, 5")
        A("v_readfirstlane_b32 s3, v1")
        A("s_and_b32 s5, s2, 31")
        A("s_and_b32 s6, s2, 7")
        A("s_lshr_b32 s7, s2, 3")
        A("s_and_b32 s7, s7, 3")
        A("s_lshr_b32 s29, s2, 2")
        A("s_and_b32 s30, s2, 3")
        A("s_mov_b32 s28, 1")
        A("s_cmp_eq_u32 s30, 0")
        A("s_cselect_b32 s28, 0, s28")
        A("s_cmp_lt_u32 s29, 28")
        A("s_cselect_b32 s31, 2, 1")
        A("s_cmp_eq_u32 s30, 1")
        A("s_cselect_b32 s28, s31, s28")
        A(f"s_mov_b32 s60, {hex(f2u(CEXP))}")
        A(f"s_mov_b32 s72, {F2_OFF}")
        if self.stamps:
            A("v_mov_b32 v250, 0")
        A("s_waitcnt lgkmcnt(0)")
        A("s_lshl_b32 s30, s4, 25")
        A("s_add_u32 s8, s38, s30")
        A("s_addc_u32 s9, s39, 0")
        A("s_and_b32 s9, s9, 0xffff")
        A("s_mov_b32 s10, 0x2000000")
        A("s_mov_b32 s11, 0x00020000")
        A("s_add_u32 s12, s40, s30")
        A("s_addc_u32 s13, s41, 0")
        A("s_and_b32 s13, s13, 0xffff")
        A("s_mov_b32 s14, 0x2000000")
        A("s_mov_b32 s15, 0x00020000")
        self.srd(16, 58, WS_SIZE)
        A(f"s_cmp_eq_u32 s3, {NWK}")
        A("s_cbranch_scc1 L_control")
        self.worker()
        self.control()
        self.label("L_end")
        A("s_endpgm")
        L.append('.section .rodata,"a"')
        L.append(".p2align 6")
        L.append(f".amdhsa_kernel {NAME}_kernel")
        L.append("  .amdhsa_next_free_vgpr 256")
        L.append("  .amdhsa_next_free_sgpr 96")
        L.append("  .amdhsa_accum_offset 256")
        L.append("  .amdhsa_group_segment_fixed_size 0")
        L.append("  .amdhsa_kernarg_size 96")
        L.append("  .amdhsa_user_sgpr_count 2")
        L.append("  .amdhsa_user_sgpr_kernarg_segment_ptr 1")
        L.append("  .amdhsa_system_sgpr_workgroup_id_x 1")
        L.append(".end_amdhsa_kernel")
        return "\n".join(L) + "\n"

if __name__ == "__main__":
    out = sys.argv[1]
    kw = json.loads(sys.argv[2]) if len(sys.argv) > 2 else {}
    open(out, "w").write(Gen(**kw).build())
```

```python
import sys, json, struct
NAME = "parallel_sum__gqa_block_cached__glu_gated_reglu__decode"
HEADER = open("cdna_kernels/%s.s.ref" % NAME).read().split("; Override launch geometry")[0]

NWG = 256
NWK = 7
NW = NWK + 1
EP_OFF = 0x0
Q_OFF = 0x1000
CTR_OFF = 0x8000
REC_OFF = 0x10000
REC_STRIDE = 8192
YP_OFF = 0x210000
YP_STRIDE = 3584
ST_OFF = 0x380000
WS_SIZE = 0x800000
L_CNT = 0
L_QF = 4
L_TBL = 64
L_XD = 5376
L_Q = 7168
L_HD = 8192
L_P = 8448
L_M = L_P + 8192
L_R = L_M + NWK * 2304
LDS_SIZE = L_R + 64
CEXP = 0.09016844005556021
def f2u(f): return struct.unpack("<I", struct.pack("<f", f))[0]

NSTAT = 3
SPR = 4 * NWK * NSTAT
BT = 4
TAG = "s34"

class Gen:
    def __init__(self, RS=1, stamps=False, lead=1, Q=1, sleep=1, PF=1, ND=4, PF0=2, noq=False, nocomp=False, allN=False, nowo=False):
        self.L = []
        self.allN = allN; self.nowo = nowo; self.noq = noq; self.nocomp = nocomp; self.PF = PF; self.ND = ND; self.PF0 = PF0; self.RS = RS; self.stamps = stamps; self.lead = lead; self.Q = Q; self.sleep = sleep
        self.uid = 0
    def A(self, s): self.L.append("  " + s)
    def C(self, s): self.L.append("  ; " + s)
    def label(self, s): self.L.append(s + ":")
    def nop(self, n):
        while n > 0:
            k = min(n, 16); self.A(f"s_nop {k-1}"); n -= k
    def setexec(self, m):
        if m == -1 or 0 <= m <= 64:
            self.A(f"s_mov_b64 exec, {m}")
        else:
            self.A(f"s_mov_b32 exec_lo, {hex(m & 0xffffffff)}")
            self.A(f"s_mov_b32 exec_hi, {hex(m >> 32)}")
    def new(self, p):
        self.uid += 1
        return f"L_{p}_{self.uid}"
    def stamp(self, k):
        if not self.stamps: return
        A = self.A
        A("s_memrealtime s[90:91]")
        A("s_waitcnt lgkmcnt(0)")
        A(f"v_writelane_b32 v250, s90, {2*k}")
        A(f"v_writelane_b32 v250, s91, {2*k+1}")
    def allreduce(self, op, v, tmp, steps=("q1", "q2", "hm", "rm", "p16", "p32")):
        A = self.A
        for st in steps:
            if st in ("q1", "q2", "hm", "rm", "ror4", "ror8"):
                mod = {"q1": "quad_perm:[1,0,3,2]", "q2": "quad_perm:[2,3,0,1]", "hm": "row_half_mirror", "rm": "row_mirror",
                       "ror4": "row_ror:4", "ror8": "row_ror:8"}[st]
                self.nop(2)
                A(f"v_{op}_f32_dpp {v}, {v}, {v} {mod} row_mask:0xf bank_mask:0xf")
            else:
                A(f"v_mov_b32 {tmp}, {v}")
                self.nop(2)
                A(f"v_permlane{'16' if st == 'p16' else '32'}_swap_b32 {tmp}, {v}")
                self.nop(1)
                A(f"v_{op}_f32 {v}, {tmp}, {v}")
    def allreduce_multi(self, op, vs, tmps, steps):
        A = self.A
        n = len(vs)
        assert n >= 3
        self.nop(2)
        for st in steps:
            if st in ("q1", "q2", "hm", "rm", "ror4", "ror8"):
                mod = {"q1": "quad_perm:[1,0,3,2]", "q2": "quad_perm:[2,3,0,1]", "hm": "row_half_mirror", "rm": "row_mirror",
                       "ror4": "row_ror:4", "ror8": "row_ror:8"}[st]
                for v in vs:
                    A(f"v_{op}_f32_dpp {v}, {v}, {v} {mod} row_mask:0xf bank_mask:0xf")
            else:
                for v, t in zip(vs, tmps): A(f"v_mov_b32 {t}, {v}")
                self.nop(2)
                for v, t in zip(vs, tmps): A(f"v_permlane{'16' if st == 'p16' else '32'}_swap_b32 {t}, {v}")
                self.nop(1)
                for v, t in zip(vs, tmps): A(f"v_{op}_f32 {v}, {t}, {v}")
    def srd(self, s, ptr, size):
        A = self.A
        A(f"s_mov_b32 s{s}, s{ptr}")
        A(f"s_and_b32 s{s+1}, s{ptr+1}, 0xffff")
        A(f"s_mov_b32 s{s+2}, {size}")
        A(f"s_mov_b32 s{s+3}, 0x00020000")
    def bf16r(self, v):
        self.A(f"v_cvt_pk_bf16_f32 {v}, {v}, {v}")
        self.A(f"v_and_b32 {v}, 0xffff0000, {v}")

    BUF = {0: 64, 1: 128, 2: 192}
    KOFF = [(c >> 1) * 2048 + (c & 1) * 256 for c in range(8)]
    def ld_tile(self, kind, buf, sreg):
        b = self.BUF[buf] + (0 if kind == "K" else 32)
        vr = ("v4", "v5") if kind == "K" else ("v6", "v7")
        srd = "s[8:11]" if kind == "K" else "s[12:15]"
        for c in range(8):
            o = self.KOFF[c]; v = vr[0]
            if o >= 4096: o -= 4096; v = vr[1]
            self.A(f"buffer_load_dwordx4 v[{b+4*c}:{b+4*c+3}], {v}, {srd}, {sreg} offen offset:{o} nt")
    def qk(self, buf):
        b = self.BUF[buf]
        for u in range(2):
            for r in range(4):
                c = 2 * r + u
                src = "0" if u == 0 else f"v[{32+4*r}:{35+4*r}]"
                self.A(f"v_mfma_f32_16x16x32_bf16 v[{32+4*r}:{35+4*r}], v[{b+4*c}:{b+4*c+3}], v[{12+4*u}:{15+4*u}], {src}")
    def softmax(self, rare_blocks):
        A = self.A
        if self.nocomp: return
        for r in range(4):
            A(f"v_mov_b32_dpp v{48+r}, v{32+4*r} quad_perm:[0,0,0,0] row_mask:0xf bank_mask:0xf")
        for k in range(1, 4):
            for r in range(4):
                A(f"v_add_f32_dpp v{48+r}, v{32+4*r+k}, v{48+r} quad_perm:[{k},{k},{k},{k}] row_mask:0xf bank_mask:0xf")
        A("v_cvt_pk_bf16_f32 v52, v48, v49")
        A("v_cvt_pk_bf16_f32 v53, v50, v51")
        A("v_lshlrev_b32 v48, 16, v52")
        A("v_and_b32 v49, 0xffff0000, v52")
        A("v_lshlrev_b32 v50, 16, v53")
        A("v_and_b32 v51, 0xffff0000, v53")
        A("v_max3_f32 v52, v48, v49, v50")
        A("v_max_f32 v52, v52, v51")
        A("v_cmp_gt_f32 vcc, v52, v28")
        rare = self.new("rare"); back = self.new("back")
        self.nop(1)
        A(f"s_cbranch_vccnz {rare}")
        self.label(back)
        for r in range(4):
            A(f"v_fma_f32 v{52+r}, v{48+r}, s60, -v29")
        for r in range(4):
            A(f"v_exp_f32 v{52+r}, v{52+r}")
        A("s_nop 0")
        for r in range(4):
            A(f"v_cvt_pk_bf16_f32 v{56+r}, v{52+r}, v{52+r}")
        A("v_add_f32 v52, v52, v53")
        A("v_add_f32 v54, v54, v55")
        A("v_add_f32 v30, v30, v52")
        A("v_add_f32 v30, v30, v54")
        rare_blocks.append((rare, back))
    def rare_block(self, rare, back):
        A = self.A
        self.label(rare)
        self.allreduce("max", "v52", "v53", steps=("p16", "p32"))
        A("v_max_f32 v52, v52, v28")
        A("v_sub_f32 v53, v28, v52")
        A("v_mul_f32 v53, s60, v53")
        A("v_exp_f32 v53, v53")
        A("v_mov_b32 v28, v52")
        A("v_mul_f32 v29, s60, v52")
        A("v_mul_f32 v30, v30, v53")
        A("v_readlane_b32 s62, v53, 0")
        A("v_readlane_b32 s63, v53, 8")
        self.nop(2)
        A("v_mov_b32 v54, s63")
        A("v_mov_b32 v55, s62")
        A("v_cndmask_b32 v54, v54, v55, s[64:65]")
        self.nop(3)
        for k in range(8):
            A(f"v_mul_f32 v{20+k}, v{20+k}, v54")
        self.nop(2)
        A(f"s_branch {back}")
    def pv(self, buf):
        A = self.A
        b = self.BUF[buf] + 32
        for r in range(4):
            a = 32 + 4 * (r & 1)
            for k in range(4):
                A(f"v_and_b32 v{a+k}, v{8+k}, v{56+r}")
            self.nop(2)
            for u in range(2):
                c = 2 * r + u
                A(f"v_mfma_f32_16x16x32_bf16 v[{20+4*u}:{23+4*u}], v[{a}:{a+3}], v[{b+4*c}:{b+4*c+3}], v[{20+4*u}:{23+4*u}]")
        self.wstamp()
    def wstamp(self):
        if not self.stamps: return
        A = self.A
        A("s_memrealtime s[90:91]")
        A("s_waitcnt lgkmcnt(0)")
        A("s_mov_b32 m0, s94")
        A("s_nop 0")
        A("v_writelane_b32 v63, s90, m0")
        A("v_writelane_b32 v1, s95, m0")
        A("s_mov_b32 s95, s69")
        A("s_add_u32 s94, s94, 1")
    def pop_issue(self):
        self.setexec(1)
        self.A("ds_add_rtn_u32 v31, v60, v61")
        self.setexec(-1)
    def pop_resolve(self, endlabel):
        A = self.A
        A("s_waitcnt lgkmcnt(0)")
        A("v_readfirstlane_b32 s66, v31")
        self.nop(2)
        A("s_lshr_b32 s67, s66, 2")
        A("s_lshl_b32 s67, s67, 2")
        A(f"s_add_u32 s67, s67, {L_TBL}")
        A("v_mov_b32 v62, s67")
        spin = self.new("spin")
        self.label(spin)
        A("ds_read_b32 v31, v62")
        A("s_waitcnt lgkmcnt(0)")
        A("v_readfirstlane_b32 s68, v31")
        self.nop(2)
        A("s_cmp_eq_u32 s68, -1")
        A(f"s_cbranch_scc1 {spin}")
        A("s_and_b32 s66, s66, 3")
        A("s_add_u32 s66, s66, s68")
        A("s_cmp_ge_u32 s66, 4096")
        A(f"s_cbranch_scc1 {endlabel}")
        A("s_lshl_b32 s69, s66, 13")
    def gemv_strip(self, breg, acc, nt=14):
        A = self.A
        for t in range(nt):
            a = 48 + 4 * (t & 1)
            for k in range(4):
                A(f"v_and_b32 v{a+k}, v{8+k}, v{32+t}")
            self.nop(2)
            src = "0" if t == 0 else f"v[{acc}:{acc+3}]"
            A(f"v_mfma_f32_16x16x32_bf16 v[{acc}:{acc+3}], v[{a}:{a+3}], v[{breg+4*t}:{breg+4*t+3}], {src}")
    def masks(self):
        A = self.A
        A("v_and_b32 v1, 1, v0")
        A("v_lshlrev_b32 v1, 4, v1")
        A("v_mov_b32 v31, 0xffff")
        A("v_lshlrev_b32 v31, v1, v31")
        A("v_bfe_u32 v1, v0, 1, 2")
        for k in range(4):
            A(f"v_cmp_eq_u32 vcc, {k}, v1")
            self.nop(2)
            A(f"v_cndmask_b32 v{8+k}, 0, v31, vcc")
    def get_tag(self):
        self.A("s_waitcnt lgkmcnt(0)")
        self.A(f"s_add_u32 {TAG}, s35, 1")

    def ln(self):
        A = self.A
        for k in range(4):
            A(f"v_lshlrev_b32 v{12+2*k}, 16, v{8+k}")
            A(f"v_and_b32 v{13+2*k}, 0xffff0000, v{8+k}")
        A("v_add_f32 v20, v12, v13")
        for k in range(2, 8):
            A(f"v_add_f32 v20, v20, v{12+k}")
        self.allreduce("add", "v20", "v21")
        A(f"v_mul_f32 v20, {hex(f2u(1.0/448.0))}, v20")
        A("v_cmp_gt_u32 vcc, 56, v0")
        A("v_mov_b32 v22, 0")
        for k in range(8):
            A(f"v_sub_f32 v23, v{12+k}, v20")
            A("v_fmac_f32 v22, v23, v23")
        A("v_cndmask_b32 v22, 0, v22, vcc")
        self.allreduce("add", "v22", "v21")
        A(f"v_mul_f32 v22, {hex(f2u(1.0/448.0))}, v22")
        self.bf16r("v22")
        self.bf16r("v20")
        A(f"v_add_f32 v22, {hex(f2u(1e-5))}, v22")
        self.bf16r("v22")
        A("v_sqrt_f32 v22, v22")
        A("s_nop 0")
        self.bf16r("v22")
        A("v_rcp_f32 v23, v22")
        A("s_nop 0")
        for k in range(8):
            A(f"v_sub_f32 v{12+k}, v{12+k}, v20")
            self.bf16r(f"v{12+k}")
            A(f"v_mul_f32 v24, v{12+k}, v23")
            A(f"v_fma_f32 v25, -v24, v22, v{12+k}")
            A(f"v_fma_f32 v24, v25, v23, v24")
            A(f"v_cvt_pk_bf16_f32 v{12+k}, v24, v24")
        A("v_lshlrev_b32 v26, 5, v0")
        self.setexec(0x00ffffffffffffff)
        A(f"ds_write_b128 v26, v[12:15] offset:{L_XD}")
        A(f"ds_write_b128 v26, v[16:19] offset:{L_XD+16}")
        self.setexec(-1)
        A("s_waitcnt lgkmcnt(0)")

    def ffn_wave(self):
        A = self.A; C = self.C
        C("FFN strip by one wave: gate/up (64 columns), h, down projection")
        self.label("L_ffn")
        self.srd(20, 36, 896)
        A("v_lshlrev_b32 v1, 4, v0")
        A("buffer_load_dwordx4 v[8:11], v1, s[20:23], 0 offen nt")
        self.srd(20, 48, 448 * 3584)
        self.srd(24, 50, 448 * 3584)
        A("v_lshrrev_b32 v2, 3, v0")
        A("s_mov_b32 s30, 3584")
        A("v_mul_lo_u32 v2, v2, s30")
        A("v_and_b32 v1, 7, v0")
        A("v_lshl_add_u32 v2, v1, 4, v2")
        A("s_lshl_b32 s30, s33, 7")
        GB = [64, 120, 176]
        chunks = [(m, q) for m in range(2) for q in range(4)]
        def issue(n):
            m, q = chunks[n]
            b = GB[n % 3]
            srd = "s[20:23]" if m == 0 else "s[24:27]"
            for t in range(14):
                A(f"s_add_u32 s31, s30, {(q*112 + t*8)*3584}")
                A(f"buffer_load_dwordx4 v[{b+4*t}:{b+4*t+3}], v2, {srd}, s31 offen nt")
        for n in range(3): issue(n)
        A("s_barrier")
        self.get_tag()
        A("s_waitcnt vmcnt(42)")
        self.ln()
        self.masks()
        A("v_lshrrev_b32 v3, 3, v0")
        A("v_lshlrev_b32 v3, 2, v3")
        for n in range(8):
            m, q = chunks[n]
            for t in range(14):
                A(f"ds_read_b32 v{32+t}, v3 offset:{L_XD + q*448 + t*32}")
            inflight = min(8, n + 3) - (n + 1)
            A(f"s_waitcnt vmcnt({14*inflight}) lgkmcnt(0)")
            acc = 56 if m == 0 else 60
            b = GB[n % 3]
            for t in range(14):
                a = 48 + 4 * (t & 1)
                for k in range(4):
                    A(f"v_and_b32 v{a+k}, v{8+k}, v{32+t}")
                self.nop(2)
                src = "0" if (t == 0 and q == 0) else f"v[{acc}:{acc+3}]"
                A(f"v_mfma_f32_16x16x32_bf16 v[{acc}:{acc+3}], v[{a}:{a+3}], v[{b+4*t}:{b+4*t+3}], {src}")
            if n + 3 < 8: issue(n + 3)
        self.srd(20, 52, 1792 * 896)
        A("v_and_b32 v4, 15, v0")
        A("v_lshrrev_b32 v5, 4, v0")
        A("v_mul_u32_u24 v6, 896, v5")
        A("v_lshl_add_u32 v6, v4, 4, v6")
        A("s_lshl_b32 s30, s33, 6")
        A("s_mul_i32 s30, s30, 896")
        DB = [64, 128, 192]
        def issue_d(n):
            b = DB[n % 3]
            for tt in range(4):
                A(f"s_add_u32 s31, s30, {(n*4+tt)*4*896}")
                for cb in range(4):
                    r = b + (tt * 4 + cb) * 4
                    A(f"buffer_load_dwordx4 v[{r}:{r+3}], v6, s[20:23], s31 offen offset:{cb*256} nt")
        for n in range(3): issue_d(n)
        A("v_lshlrev_b32 v7, 4, v0")
        self.nop(4)
        A(f"ds_write_b128 v7, v[56:59] offset:{L_P}")
        A(f"ds_write_b128 v7, v[60:63] offset:{L_P+1024}")
        A("v_and_b32 v2, 7, v0")
        A("v_bfe_u32 v3, v0, 3, 1")
        A("v_lshl_add_u32 v7, v3, 4, v2")
        A("v_lshlrev_b32 v7, 4, v7")
        A("s_waitcnt lgkmcnt(0)")
        A(f"ds_read_b128 v[32:35], v7 offset:{L_P}")
        A(f"ds_read_b128 v[36:39], v7 offset:{L_P+640}")
        A(f"ds_read_b128 v[40:43], v7 offset:{L_P+1024}")
        A(f"ds_read_b128 v[44:47], v7 offset:{L_P+1024+640}")
        A("s_waitcnt lgkmcnt(0)")
        for k in range(4):
            A(f"v_add_f32 v{32+k}, v{32+k}, v{36+k}")
            A(f"v_add_f32 v{40+k}, v{40+k}, v{44+k}")
            self.bf16r(f"v{32+k}")
            self.bf16r(f"v{40+k}")
            A(f"v_max_f32 v{32+k}, 0, v{32+k}")
            A(f"v_mul_f32 v{32+k}, v{32+k}, v{40+k}")
            A(f"v_cvt_pk_bf16_f32 v{32+k}, v{32+k}, v{32+k}")
        A("v_lshlrev_b32 v2, 5, v2")
        A("v_lshl_add_u32 v2, v3, 4, v2")
        self.setexec(0xffff)
        A(f"ds_write_b128 v2, v[32:35] offset:{L_HD}")
        self.setexec(-1)
        A("s_waitcnt lgkmcnt(0)")
        A("v_lshlrev_b32 v3, 2, v5")
        for t in range(16):
            A(f"ds_read_b32 v{12+t}, v3 offset:{L_HD + t*16}")
        A("s_waitcnt lgkmcnt(0)")
        for n in range(4):
            inflight = min(4, n + 3) - (n + 1)
            A(f"s_waitcnt vmcnt({16*inflight})")
            b = DB[n % 3]
            for tt in range(4):
                t = n * 4 + tt
                a = 48 + 4 * (t & 1)
                for k in range(4):
                    A(f"v_and_b32 v{a+k}, v{8+k}, v{12+t}")
                self.nop(2)
                for cb in range(4):
                    r = b + (tt * 4 + cb) * 4
                    src = "0" if t == 0 else f"v[{32+4*cb}:{35+4*cb}]"
                    A(f"v_mfma_f32_16x16x32_bf16 v[{32+4*cb}:{35+4*cb}], v[{a}:{a+3}], v[{r}:{r+3}], {src}")
            if n + 3 < 4: issue_d(n + 3)
        for k in range(16):
            A(f"v_mov_b32 v{65+2*k}, {TAG}")
        A("v_lshlrev_b32 v6, 6, v4")
        A("v_lshl_add_u32 v6, v5, 5, v6")
        A("s_add_u32 s31, s33, 256")
        A(f"s_mul_i32 s31, s31, {YP_STRIDE}")
        A(f"s_add_u32 s31, s31, {YP_OFF}")
        self.nop(4)
        for cb in range(4):
            for k in range(4):
                A(f"v_mov_b32 v{64+8*cb+2*k}, v{32+4*cb+k}")
            self.setexec(0xffffffff if cb < 3 else 0x00ff00ff)
            A(f"buffer_store_dwordx4 v[{64+8*cb}:{67+8*cb}], v6, s[16:19], s31 offen offset:{cb*1024} sc1")
            A(f"buffer_store_dwordx4 v[{68+8*cb}:{71+8*cb}], v6, s[16:19], s31 offen offset:{cb*1024+16} sc1")
            self.setexec(-1)
        A("s_waitcnt vmcnt(0)")
        A("s_branch L_prefetch0")

    def worker(self):
        A = self.A; C = self.C
        self.label("L_worker")
        A("s_cmp_eq_u32 s28, 2")
        w0 = self.new("w")
        A(f"s_cbranch_scc0 {w0}")
        A(f"s_cmp_eq_u32 s3, {NWK-1}")
        A("s_cbranch_scc1 L_ffn")
        self.label(w0)
        A("s_cmp_eq_u32 s28, 0")
        A("s_cbranch_scc1 L_wroleQ")
        A("s_mov_b32 s32, 1")
        A("s_branch L_prefetch")

        C("role Q: q strip producer (64 rows per wave)")
        self.label("L_wroleQ")
        self.srd(20, 42, 448 * 8192)
        A("v_lshrrev_b32 v62, 3, v0")
        A("v_lshlrev_b32 v62, 13, v62")
        A("v_and_b32 v1, 7, v0")
        A("v_lshl_add_u32 v62, v1, 4, v62")
        A(f"s_lshl_b32 s30, s3, 19")
        A("s_lshl_b32 s31, s29, 7")
        A("s_add_u32 s30, s30, s31")
        for t in range(8):
            A(f"s_add_u32 s31, s30, {t*8*8192}")
            A(f"buffer_load_dwordx4 v[{192+4*t}:{195+4*t}], v62, s[20:23], s31 offen nt")
        self.masks()
        A("s_barrier")
        A("v_lshrrev_b32 v63, 3, v0")
        A("v_lshlrev_b32 v63, 2, v63")
        A(f"s_lshl_b32 s31, s3, 8")
        A(f"s_add_u32 s31, s31, {L_XD}")
        A("v_add_u32 v63, s31, v63")
        A("s_barrier")
        for t in range(8):
            A(f"ds_read_b32 v{32+t}, v63 offset:{t*32}")
        A("s_waitcnt vmcnt(0) lgkmcnt(0)")
        self.gemv_strip(192, 56, nt=8)
        A("v_lshlrev_b32 v62, 4, v0")
        A("s_lshl_b32 s31, s3, 10")
        A(f"s_add_u32 s31, s31, {L_P}")
        A("v_add_u32 v62, s31, v62")
        self.nop(8)
        A("ds_write_b128 v62, v[56:59]")
        A("s_waitcnt lgkmcnt(0)")
        A("s_barrier")
        A("s_barrier")
        self.label("L_prefetch0")
        A("s_mov_b32 s32, 0")

        C("staggered prefetch of the 3 static items")
        self.label("L_prefetch")
        A("v_and_b32 v2, 15, v0")
        A("v_lshrrev_b32 v3, 4, v0")
        A("v_lshrrev_b32 v4, 2, v2")
        A("v_lshlrev_b32 v4, 9, v4")
        A("v_lshl_add_u32 v4, v3, 6, v4")
        A("v_and_b32 v1, 3, v2")
        A("v_lshl_add_u32 v4, v1, 4, v4")
        A("v_add_u32 v5, 4096, v4")
        A("v_lshlrev_b32 v6, 9, v3")
        A("v_lshl_add_u32 v6, v2, 4, v6")
        A("v_add_u32 v7, 4096, v6")
        A("s_lshl_b32 s61, s6, 9")
        A(f"s_mul_i32 s30, s7, {NWK}")
        A("s_add_u32 s61, s61, s30")
        A("s_add_u32 s61, s61, s3")
        A("s_lshl_b32 s61, s61, 13")
        A(f"s_add_u32 s70, s61, {4*NWK*8192}")
        A(f"s_add_u32 s71, s61, {8*NWK*8192}")
        seq = [("K", 0, "s61"), ("V", 0, "s61"), ("K", 1, "s70"), ("V", 1, "s70"), ("K", 2, "s71"), ("V", 2, "s71")]
        first = self.PF0
        for n in range(first): self.ld_tile(*seq[n])
        A("s_cmp_eq_u32 s32, 0")
        w1 = self.new("w")
        A(f"s_cbranch_scc1 {w1}")
        A("s_barrier")
        self.label(w1)
        self.masks()
        self.get_tag()
        for n in range(first, 6):
            A(f"s_waitcnt vmcnt({8*(self.PF-1)})")
            self.ld_tile(*seq[n])
        self.Qinit = [("K", 2, 2), ("V", 2, 2)][2 - self.PF:]
        A(f"v_mov_b32 v62, {L_QF}")
        sq = self.new("spinq")
        self.label(sq)
        A("ds_read_b32 v31, v62")
        A("s_waitcnt lgkmcnt(0)")
        A("v_readfirstlane_b32 s66, v31")
        self.nop(2)
        A("s_cmp_lg_u32 s66, 0")
        sqd = self.new("spinqd")
        A(f"s_cbranch_scc1 {sqd}")
        A("s_sleep 1")
        A(f"s_branch {sq}")
        self.label(sqd)
        A("v_lshrrev_b32 v62, 3, v2")
        A("v_lshlrev_b32 v62, 9, v62")
        A("v_lshl_add_u32 v62, v3, 6, v62")
        A("v_and_b32 v1, 3, v2")
        A("v_lshl_add_u32 v62, v1, 4, v62")
        A(f"ds_read_b128 v[12:15], v62 offset:{L_Q}")
        A(f"ds_read_b128 v[16:19], v62 offset:{L_Q+256}")
        for k in range(8):
            A(f"v_mov_b32 v{20+k}, 0")
        A("v_mov_b32 v28, 0xff800000")
        A("v_mov_b32 v29, 0xff800000")
        A("v_mov_b32 v30, 0")
        A(f"v_mov_b32 v60, {L_CNT}")
        A("v_mov_b32 v61, 1")
        A("s_mov_b32 s64, -1")
        A("s_mov_b32 s65, 0")
        A("s_waitcnt lgkmcnt(0)")
        if self.stamps:
            A("v_mov_b32 v63, 0")
            A("v_mov_b32 v1, 0")
            A("s_mov_b32 s94, 0")
            A("s_mov_b32 s95, -1")
            A("s_mov_b32 s69, -1")
            self.wstamp()
        rare = []
        drains = []
        Q = list(self.Qinit)
        def wait(kind, item):
            idxs = [i for i, q in enumerate(Q) if q[0] == kind and q[1] == item]
            if not idxs: return
            idx = idxs[0]
            after = len(Q) - idx - 1
            A(f"s_waitcnt vmcnt({8*after})")
            del Q[:idx + 1]
        def process(item, buf, refill, nxt, pending):
            if refill: self.pop_issue()
            wait("K", item)
            self.qk(buf)
            if refill:
                d = self.new("drain")
                drains.append((d, item, buf, list(Q), list(pending)))
                self.pop_resolve(d)
                self.ld_tile("K", buf, "s69"); Q.append(("K", nxt, buf))
            else:
                self.nop(8)
            self.softmax(rare)
            wait("V", item)
            self.pv(buf)
            if refill:
                self.ld_tile("V", buf, "s69"); Q.append(("V", nxt, buf))
        RS = self.RS
        if self.ND < NWK:
            A(f"s_cmp_ge_u32 s3, {self.ND}")
            A("s_cbranch_scc1 L_static_only")
        nxt = 3
        pend = [(1, 1), (2, 2)]
        for n in range(3):
            rf = n < RS
            pending = [(it, b) for (it, b) in pend if it > n]
            pending += [(3 + k, k) for k in range(min(n, RS))]
            process(n, n, rf, nxt, pending)
            if rf: nxt += 1
        Q0 = [(k, it - 3, b) for (k, it, b) in Q]
        self.label("L_loop")
        Q[:] = list(Q0)
        for n in range(RS):
            pending = [(m, m) for m in range(n + 1, RS)] + [(RS + k, k) for k in range(n)]
            process(n, n, True, n + RS, pending)
        Q1 = [(k, it - RS, b) for (k, it, b) in Q]
        assert Q1 == Q0, (Q0, Q1)
        A("s_branch L_loop")
        for (d, item, buf, q, pending) in drains:
            self.label(d)
            Q[:] = list(q)
            self.nop(8)
            self.softmax(rare)
            wait("V", item)
            self.pv(buf)
            for (it, b) in pending:
                wait("K", it)
                self.qk(b)
                self.nop(8)
                self.softmax(rare)
                wait("V", it)
                self.pv(b)
            assert not Q, Q
            A("s_branch L_wfin")
        if self.ND < NWK:
            self.label("L_static_only")
            Q[:] = list(self.Qinit)
            for n in range(3):
                process(n, n, False, None, [])
            A("s_branch L_wfin")
        for (r, b) in rare:
            self.rare_block(r, b)
        self.label("L_wfin")
        if self.stamps:
            A("v_lshlrev_b32 v62, 2, v0")
            A("s_lshl_b32 s31, s2, 3")
            A("s_add_u32 s31, s31, s3")
            A("s_lshl_b32 s31, s31, 8")
            A(f"s_add_u32 s31, s31, {ST_OFF + 0x10000}")
            A("buffer_store_dword v63, v62, s[16:19], s31 offen")
            A("s_add_u32 s31, s31, 0x80000")
            A("buffer_store_dword v1, v62, s[16:19], s31 offen")
        self.allreduce("add", "v30", "v31", steps=("p16", "p32"))
        A("v_lshrrev_b32 v62, 1, v3")
        A("v_lshlrev_b32 v62, 10, v62")
        A("v_lshl_add_u32 v62, v2, 5, v62")
        A("v_and_b32 v1, 1, v3")
        A("v_lshl_add_u32 v62, v1, 4, v62")
        A(f"s_mul_i32 s31, s3, 2304")
        A(f"s_add_u32 s31, s31, {L_M}")
        A("v_add_u32 v62, s31, v62")
        self.nop(4)
        A("ds_write_b128 v62, v[20:23]")
        A("ds_write_b128 v62, v[24:27] offset:512")
        A("v_lshrrev_b32 v63, 3, v0")
        A("v_lshlrev_b32 v63, 3, v63")
        A("v_add_u32 v63, s31, v63")
        A("v_mov_b32 v29, v30")
        self.setexec(0x101)
        A("ds_write_b64 v63, v[28:29] offset:2048")
        self.setexec(-1)
        A("s_waitcnt lgkmcnt(0)")
        A("s_barrier")
        A("s_cmp_ge_u32 s2, 112")
        A("s_cbranch_scc1 L_end")
        A("s_cmp_ge_u32 s3, 4")
        A("s_cbranch_scc1 L_end")
        C("hop 2: thread t = w*64+lane polls ypart[t][4b..4b+3] granules")
        A("s_lshl_b32 s31, s3, 6")
        A("v_add_u32 v1, s31, v0")
        A(f"v_mul_u32_u24 v62, {YP_STRIDE}, v1")
        A("s_lshl_b32 s31, s2, 5")
        A(f"s_add_u32 s31, s31, {YP_OFF}")
        p = self.new("poll2"); pd = self.new("poll2d")
        self.label(p)
        A("buffer_load_dwordx4 v[32:35], v62, s[16:19], s31 offen sc1")
        A("buffer_load_dwordx4 v[36:39], v62, s[16:19], s31 offen offset:16 sc1")
        A("s_waitcnt vmcnt(0)")
        self.check_tags(["v33", "v35", "v37", "v39"], "v40")
        A(f"s_cbranch_vccz {pd}")
        if self.sleep: A(f"s_sleep {self.sleep}")
        A(f"s_branch {p}")
        self.label(pd)
        self.allreduce_multi("add", ["v32", "v34", "v36", "v38"], ["v40", "v41", "v42", "v43"], ("q1", "q2", "hm", "rm", "p16", "p32"))
        A("v_mov_b32 v33, v34"); A("v_mov_b32 v34, v36"); A("v_mov_b32 v35, v38")
        A("s_lshl_b32 s31, s3, 4")
        A(f"s_add_u32 s31, s31, {L_R}")
        A("v_mov_b32 v62, s31")
        self.setexec(1)
        A("ds_write_b128 v62, v[32:35]")
        self.setexec(-1)
        A("s_waitcnt lgkmcnt(0)")
        A("s_barrier")
        A("s_branch L_end")

    def check_tags(self, regs, tmp):
        A = self.A
        A(f"v_xor_b32 {tmp}, {TAG}, {regs[0]}")
        for r in regs[1:]:
            A(f"v_xor_b32 v63, {TAG}, {r}")
            A(f"v_or_b32 {tmp}, {tmp}, v63")
        A(f"v_cmp_ne_u32 vcc, 0, {tmp}")
        self.nop(1)

    def control(self):
        A = self.A; C = self.C
        self.label("L_control")
        self.stamp(0)
        self.srd(20, 36, 896)
        A("v_lshlrev_b32 v1, 4, v0")
        A("s_cmp_lg_u32 s28, 0")
        x0 = self.new("x")
        A(f"s_cbranch_scc1 {x0}")
        A("buffer_load_dwordx4 v[8:11], v1, s[20:23], 0 offen nt")
        self.label(x0)
        A("v_mov_b32 v4, -1"); A("v_mov_b32 v5, -1"); A("v_mov_b32 v6, -1"); A("v_mov_b32 v7, -1")
        for k in range(5):
            A(f"ds_write_b128 v1, v[4:7] offset:{L_TBL + k*1024}")
        A("v_mov_b32 v2, 0")
        A(f"v_mov_b32 v3, {1 if self.noq else 0}")
        A(f"ds_write_b64 v2, v[2:3] offset:{L_CNT}")
        A("s_waitcnt lgkmcnt(0)")
        A("s_barrier")
        self.get_tag()
        A("s_cmp_lg_u32 s28, 0")
        A("s_cbranch_scc1 L_cpollq")
        C("role Q: producer 8g zeroes the ticket counters of head g")
        A("s_and_b32 s30, s29, 7")
        A("s_cmp_lg_u32 s30, 0")
        A("s_cbranch_scc1 L_cln")
        self.setexec(0xff)
        A("v_lshlrev_b32 v3, 8, v0")
        A("s_lshl_b32 s30, s29, 8")
        A(f"s_add_u32 s31, s30, {CTR_OFF}")
        A("buffer_store_dword v2, v3, s[16:19], s31 offen sc1")
        self.setexec(-1)
        self.label("L_cln")
        A("s_waitcnt vmcnt(0)")
        self.ln()
        A("s_barrier")
        self.stamp(1)
        A("v_and_b32 v2, 7, v0")
        A("v_bfe_u32 v3, v0, 3, 1")
        A("v_lshl_add_u32 v2, v3, 4, v2")
        A("v_lshlrev_b32 v2, 4, v2")
        A(f"v_mov_b32 v17, {TAG}")
        A(f"v_mov_b32 v19, {TAG}")
        A("v_and_b32 v4, 7, v0")
        A("v_lshlrev_b32 v4, 5, v4")
        A("v_lshl_add_u32 v4, v3, 4, v4")
        A("s_lshl_b32 s31, s29, 8")
        A(f"s_add_u32 s31, s31, {Q_OFF}")
        A("s_barrier")
        for w in range(NWK):
            A(f"ds_read_b128 v[{32+8*w}:{35+8*w}], v2 offset:{L_P + w*1024}")
            A(f"ds_read_b128 v[{36+8*w}:{39+8*w}], v2 offset:{L_P + w*1024 + 640}")
        A("s_waitcnt lgkmcnt(0)")
        for k in range(4):
            A(f"v_add_f32 v{12+k}, v{32+k}, v{36+k}")
        for w in range(1, NWK):
            for k in range(4):
                A(f"v_add_f32 v{32+8*w+k}, v{32+8*w+k}, v{36+8*w+k}")
            for k in range(4):
                A(f"v_add_f32 v{12+k}, v{12+k}, v{32+8*w+k}")
        A("v_cvt_pk_bf16_f32 v16, v12, v13")
        A("v_cvt_pk_bf16_f32 v18, v14, v15")
        self.setexec(0xffff)
        A("buffer_store_dwordx4 v[16:19], v4, s[16:19], s31 offen sc1")
        self.setexec(-1)
        A("s_barrier")
        self.stamp(2)
        C("poll q granules of this head group")
        self.label("L_cpollq")
        A("v_lshlrev_b32 v2, 4, v0")
        A("s_lshl_b32 s31, s4, 11")
        A(f"s_add_u32 s31, s31, {Q_OFF}")
        p = self.new("pollq"); pd = self.new("pollqd")
        self.label(p)
        A("buffer_load_dwordx4 v[4:7], v2, s[16:19], s31 offen sc1")
        A("buffer_load_dwordx4 v[8:11], v2, s[16:19], s31 offen offset:1024 sc1")
        A("s_waitcnt vmcnt(0)")
        self.check_tags(["v5", "v7", "v9", "v11"], "v12")
        A(f"s_cbranch_vccz {pd}")
        if not self.allN: A(f"s_branch {p}")
        self.label(pd)
        self.stamp(3)
        A("v_mov_b32 v5, v6")
        A("v_mov_b32 v9, v10")
        A("v_lshlrev_b32 v3, 3, v0")
        A(f"ds_write_b64 v3, v[4:5] offset:{L_Q}")
        A(f"ds_write_b64 v3, v[8:9] offset:{L_Q+512}")
        A("v_mov_b32 v4, 1")
        A(f"v_mov_b32 v5, {L_QF}")
        A("s_waitcnt lgkmcnt(0)")
        A("ds_write_b32 v5, v4")
        self.stamp(4)
        self.srd(20, 44, 4096 * 896)
        A("v_and_b32 v2, 15, v0")
        A("v_lshrrev_b32 v3, 4, v0")
        A("v_mul_u32_u24 v4, 896, v3")
        A("v_lshl_add_u32 v4, v2, 4, v4")
        A("s_lshl_b32 s30, s2, 4")
        A("s_mul_i32 s30, s30, 896")
        for t in range(4):
            A(f"s_add_u32 s31, s30, {t*4*896}")
            for cb in range(4):
                b = 128 + (t * 4 + cb) * 4
                A(f"buffer_load_dwordx4 v[{b}:{b+3}], v4, s[20:23], s31 offen offset:{cb*256} nt")
        self.masks()
        C("ticket loop")
        A("s_mov_b32 s66, 0")
        A("s_mov_b32 s67, s6")
        A(f"v_mov_b32 v12, {BT}")
        A(f"v_mov_b32 v13, {L_CNT}")
        A("s_lshl_b32 s68, s4, 11")
        A(f"s_add_u32 s68, s68, {CTR_OFF}")
        self.label("L_floop")
        A(f"s_cmp_lt_u32 s66, {self.Q}")
        A("s_cbranch_scc1 L_fgo")
        A(f"s_sub_u32 s69, s66, {self.Q}")
        A("s_lshl_b32 s69, s69, 2")
        A(f"s_add_u32 s69, s69, {self.lead}")
        self.label("L_fwait")
        A("ds_read_b32 v14, v13")
        A("s_waitcnt lgkmcnt(0)")
        A("v_readfirstlane_b32 s70, v14")
        self.nop(2)
        A("s_cmp_ge_u32 s70, s69")
        A("s_cbranch_scc1 L_fgo")
        A("s_sleep 2")
        A("s_branch L_fwait")
        self.label("L_fgo")
        A("s_lshl_b32 s71, s67, 8")
        A("v_mov_b32 v15, s71")
        self.setexec(1)
        A("buffer_atomic_add v12, v15, s[16:19], s68 offen sc0 sc1")
        A("s_waitcnt vmcnt(0)")
        A("v_readfirstlane_b32 s70, v12")
        A(f"v_mov_b32 v12, {BT}")
        self.setexec(-1)
        self.nop(2)
        A(f"s_add_u32 s70, s70, {SPR}")
        A("s_cmp_lt_u32 s70, 512")
        A("s_cbranch_scc1 L_fgot")
        A("v_lshlrev_b32 v15, 8, v0")
        self.setexec(0xff)
        A("buffer_load_dword v14, v15, s[16:19], s68 offen sc1")
        A("s_waitcnt vmcnt(0)")
        A(f"v_cmp_gt_u32 vcc, {512 - SPR}, v14")
        self.setexec(-1)
        self.nop(2)
        A("s_and_b32 s71, vcc_lo, 0xff")
        A("s_cmp_eq_u32 s71, 0")
        A("s_cbranch_scc1 L_fend")
        A("s_lshl_b32 s73, s71, 8")
        A("s_or_b32 s73, s73, s71")
        A("s_add_u32 s74, s67, 1")
        A("s_lshr_b32 s73, s73, s74")
        A("s_ff1_i32_b32 s73, s73")
        A("s_add_u32 s67, s74, s73")
        A("s_and_b32 s67, s67, 7")
        A("s_branch L_fgo")
        self.label("L_fend")
        A("s_mov_b32 s70, 4096")
        A("s_branch L_fwr")
        self.label("L_fgot")
        A("s_lshl_b32 s71, s67, 9")
        A("s_add_u32 s70, s70, s71")
        self.label("L_fwr")
        A("s_lshl_b32 s69, s66, 2")
        A(f"s_add_u32 s69, s69, {L_TBL}")
        A("v_mov_b32 v14, s70")
        A("v_mov_b32 v15, s69")
        self.setexec(1)
        A("ds_write_b32 v15, v14")
        self.setexec(-1)
        A("s_add_u32 s66, s66, 1")
        A("s_cmp_lt_u32 s70, 4096")
        A("s_cbranch_scc1 L_floop")
        self.setexec(1)
        A("ds_write_b32 v15, v14 offset:4")
        A("ds_write_b32 v15, v14 offset:8")
        self.setexec(-1)
        self.stamp(5)
        C("FFN part of hop 2 (wg < 112): sum 28 partials for columns 4b..4b+3, plus x")
        A("s_cmp_ge_u32 s2, 112")
        A("s_cbranch_scc1 L_cbt1")
        A(f"v_mul_u32_u24 v2, {YP_STRIDE}, v0")
        A("s_lshl_b32 s31, s2, 5")
        A(f"s_add_u32 s31, s31, {YP_OFF + 256*YP_STRIDE}")
        p = self.new("pollf"); pd = self.new("pollfd")
        self.setexec(0xfffffff)
        self.label(p)
        A("buffer_load_dwordx4 v[112:115], v2, s[16:19], s31 offen sc1")
        A("buffer_load_dwordx4 v[116:119], v2, s[16:19], s31 offen offset:16 sc1")
        A("s_waitcnt vmcnt(0)")
        self.check_tags(["v113", "v115", "v117", "v119"], "v12")
        A(f"s_cbranch_vccz {pd}")
        A("s_sleep 1")
        if not self.allN: A(f"s_branch {p}")
        self.label(pd)
        self.setexec(-1)
        A("v_cmp_gt_u32 vcc, 28, v0")
        self.nop(2)
        for k in range(4):
            A(f"v_cndmask_b32 v{112+2*k}, 0, v{112+2*k}, vcc")
        self.srd(20, 36, 896)
        A("s_lshl_b32 s31, s2, 3")
        A("v_mov_b32 v2, 0")
        A("buffer_load_dwordx2 v[120:121], v2, s[20:23], s31 offen nt")
        self.allreduce_multi("add", ["v112", "v114", "v116", "v118"], ["v12", "v14", "v15", "v16"], ("q1", "q2", "hm", "rm", "p16", "p32"))
        for k in range(4):
            self.bf16r(f"v{112+2*k}")
        A("s_waitcnt vmcnt(0)")
        self.label("L_cbt1")
        for k in range(8):
            A(f"v_mov_b32 v{53+2*k}, {TAG}")
        A(f"v_mov_b32 v49, {TAG}"); A(f"v_mov_b32 v51, {TAG}")
        A(f"v_mov_b32 v69, {TAG}"); A(f"v_mov_b32 v71, {TAG}")
        A("v_lshlrev_b32 v3, 4, v0")
        A("v_lshlrev_b32 v4, 5, v0")
        A(f"v_mov_b32 v2, {L_M + 2048}")
        A(f"s_mul_i32 s31, s2, {REC_STRIDE}")
        A(f"s_add_u32 s31, s31, {REC_OFF}")
        A("s_waitcnt lgkmcnt(0)")
        A("s_barrier")
        self.stamp(6)
        C("merge the worker partials")
        HB = 72; DBs = 128 + 64
        for w in range(NWK):
            A(f"ds_read_b128 v[{HB+4*w}:{HB+3+4*w}], v2 offset:{w*2304}")
        for w in range(NWK):
            for h in range(2):
                b = DBs + (w * 2 + h) * 4
                A(f"ds_read_b128 v[{b}:{b+3}], v3 offset:{L_M + w*2304 + h*1024}")
        A(f"s_waitcnt lgkmcnt({min(15, 2*NWK)})")
        for h in range(2):
            m = lambda w: f"v{HB+4*w+2*h}"
            l = lambda w: f"v{HB+1+4*w+2*h}"
            M = ("v48", "v68")[h]; Lr = ("v50", "v70")[h]
            A(f"v_max_f32 {M}, {m(0)}, {m(1)}")
            for w in range(2, NWK):
                A(f"v_max_f32 {M}, {M}, {m(w)}")
            for w in range(NWK):
                A(f"v_sub_f32 {m(w)}, {m(w)}, {M}")
                A(f"v_mul_f32 {m(w)}, s60, {m(w)}")
                A(f"v_exp_f32 {m(w)}, {m(w)}")
            A("s_nop 0")
            A(f"v_mul_f32 {Lr}, {m(0)}, {l(0)}")
            for w in range(1, NWK):
                A(f"v_fmac_f32 {Lr}, {m(w)}, {l(w)}")
        self.setexec(1)
        A("v_mov_b32 v2, 0")
        A("s_add_u32 s30, s31, 4096")
        A("buffer_store_dwordx4 v[48:51], v2, s[16:19], s30 offen sc1")
        A("buffer_store_dwordx4 v[68:71], v2, s[16:19], s30 offen offset:16 sc1")
        self.setexec(-1)
        A("s_waitcnt lgkmcnt(0)")
        for h in range(2):
            for w in range(NWK):
                for k in range(4):
                    d = 52 + 8 * h + 2 * k
                    op = "v_mul_f32" if w == 0 else "v_fmac_f32"
                    A(f"{op} v{d}, v{HB+4*w+2*h}, v{DBs + (w*2+h)*4 + k}")
            A(f"buffer_store_dwordx4 v[{52+8*h}:{55+8*h}], v4, s[16:19], s31 offen offset:{h*2048} sc1")
            A(f"buffer_store_dwordx4 v[{56+8*h}:{59+8*h}], v4, s[16:19], s31 offen offset:{h*2048+16} sc1")
        self.stamp(7)
        C("hop 1: poll 32 records: lane l: rec 8n + (l>>3), piece l&7 (2 granules)")
        A("v_lshrrev_b32 v2, 3, v0")
        A(f"v_lshlrev_b32 v2, 13, v2")
        A("v_and_b32 v3, 7, v0")
        A("v_lshl_add_u32 v4, v3, 4, v2")
        A("s_lshl_b32 s30, s4, 18")
        A(f"s_add_u32 s30, s30, {REC_OFF}")
        A("s_lshl_b32 s31, s5, 7")
        A("s_add_u32 s31, s31, s30")
        A("s_lshr_b32 s74, s5, 4")
        A("s_lshl_b32 s74, s74, 4")
        A("s_add_u32 s74, s74, s30")
        A("s_add_u32 s74, s74, 4096")
        for n in range(1, 4):
            A(f"s_add_u32 s{75+2*(n-1)}, s31, {n*0x10000}")
            A(f"s_add_u32 s{76+2*(n-1)}, s74, {n*0x10000}")
        p = self.new("poll1"); pd = self.new("poll1d")
        self.label(p)
        for n in range(4):
            so = "s31" if n == 0 else f"s{75+2*(n-1)}"
            sh = "s74" if n == 0 else f"s{76+2*(n-1)}"
            A(f"buffer_load_dwordx4 v[{32+4*n}:{35+4*n}], v4, s[16:19], {so} offen sc1")
            A(f"buffer_load_dwordx4 v[{64+4*n}:{67+4*n}], v2, s[16:19], {sh} offen sc1")
        A("s_waitcnt vmcnt(0)")
        self.check_tags([f"v{33+2*k}" for k in range(8)] + [f"v{65+2*k}" for k in range(8)], "v12")
        A(f"s_cbranch_vccz {pd}")
        if self.sleep: A(f"s_sleep {self.sleep}")
        A(f"s_branch {p}")
        self.label(pd)
        self.stamp(8)
        A("v_max3_f32 v48, v64, v68, v72")
        A("v_max_f32 v48, v48, v76")
        self.allreduce("max", "v48", "v49", steps=("ror8", "p16", "p32"))
        for n in range(4):
            A(f"v_sub_f32 v{64+4*n}, v{64+4*n}, v48")
            A(f"v_mul_f32 v{64+4*n}, s60, v{64+4*n}")
            A(f"v_exp_f32 v{64+4*n}, v{64+4*n}")
        A("s_nop 0")
        A("v_mul_f32 v50, v64, v66"); A("v_mul_f32 v51, v64, v32"); A("v_mul_f32 v52, v64, v34")
        for n in range(1, 4):
            A(f"v_fmac_f32 v50, v{64+4*n}, v{66+4*n}")
            A(f"v_fmac_f32 v51, v{64+4*n}, v{32+4*n}")
            A(f"v_fmac_f32 v52, v{64+4*n}, v{34+4*n}")
        self.allreduce_multi("add", ["v50", "v51", "v52"], ["v53", "v54", "v55"], ("ror8", "p16", "p32"))
        A("v_rcp_f32 v53, v50")
        A("s_nop 0")
        for r in ("v51", "v52"):
            A(f"v_mul_f32 v54, {r}, v53")
            A(f"v_fma_f32 v55, -v54, v50, {r}")
            A(f"v_fma_f32 {r}, v55, v53, v54")
        A("v_lshrrev_b32 v3, 4, v0")
        A("v_and_b32 v5, 1, v3")
        A("v_cmp_eq_u32 vcc, 1, v5"); self.nop(2)
        A("v_cndmask_b32 v51, v51, v52, vcc")
        A("v_cvt_pk_bf16_f32 v51, v51, v51")
        self.nop(2)
        for t in range(4):
            A(f"v_mov_b32_dpp v{40+t}, v51 row_newbcast:{2*t} row_mask:0x3 bank_mask:0xf")
            A(f"v_mov_b32_dpp v{40+t}, v51 row_newbcast:{2*t+1} row_mask:0xc bank_mask:0xf")
        for k in range(16):
            A(f"v_mov_b32 v{81+2*k}, {TAG}")
        for t in range(4):
            a = 44 + 4 * (t & 1)
            for k in range(4):
                A(f"v_and_b32 v{a+k}, v{8+k}, v{40+t}")
            self.nop(2)
            for cb in range(4):
                b = 128 + (t * 4 + cb) * 4
                src = "0" if t == 0 else f"v[{64+4*cb}:{67+4*cb}]"
                A(f"v_mfma_f32_16x16x32_bf16 v[{64+4*cb}:{67+4*cb}], v[{a}:{a+3}], v[{b}:{b+3}], {src}")
        A("v_and_b32 v2, 15, v0")
        A("v_lshlrev_b32 v4, 6, v2")
        A("v_lshl_add_u32 v4, v3, 5, v4")
        A(f"s_mul_i32 s31, s2, {YP_STRIDE}")
        A(f"s_add_u32 s31, s31, {YP_OFF}")
        self.nop(4)
        for cb in range(4):
            for k in range(4):
                A(f"v_mov_b32 v{80+8*cb+2*k}, v{64+4*cb+k}")
            self.setexec(0xffffffff if cb < 3 else 0x00ff00ff)
            A(f"buffer_store_dwordx4 v[{80+8*cb}:{83+8*cb}], v4, s[16:19], s31 offen offset:{cb*1024} sc1")
            A(f"buffer_store_dwordx4 v[{84+8*cb}:{87+8*cb}], v4, s[16:19], s31 offen offset:{cb*1024+16} sc1")
            self.setexec(-1)
        self.stamp(9)
        A("s_cmp_ge_u32 s2, 112")
        A("s_cbranch_scc1 L_cend")
        self.srd(20, 54, 896)
        A("v_lshlrev_b32 v48, 16, v120"); A("v_and_b32 v49, 0xffff0000, v120")
        A("v_lshlrev_b32 v50, 16, v121"); A("v_and_b32 v51, 0xffff0000, v121")
        A(f"v_mov_b32 v2, {L_R}")
        A("s_barrier")
        for w in range(4):
            A(f"ds_read_b128 v[{32+4*w}:{35+4*w}], v2 offset:{w*16}")
        A("s_waitcnt lgkmcnt(0)")
        for k in range(4):
            A(f"v_add_f32 v{32+k}, v{32+k}, v{36+k}")
            A(f"v_add_f32 v{40+k}, v{40+k}, v{44+k}")
            A(f"v_add_f32 v{32+k}, v{32+k}, v{40+k}")
            self.bf16r(f"v{32+k}")
            A(f"v_add_f32 v{32+k}, v{48+k}, v{32+k}")
            self.bf16r(f"v{32+k}")
            A(f"v_add_f32 v{32+k}, v{32+k}, v{112+2*k}")
        A("v_cvt_pk_bf16_f32 v32, v32, v33")
        A("v_cvt_pk_bf16_f32 v33, v34, v35")
        A("s_lshl_b32 s31, s2, 3")
        A("v_mov_b32 v2, 0")
        self.setexec(1)
        A("buffer_store_dwordx2 v[32:33], v2, s[20:23], s31 offen")
        A("s_cmp_lg_u32 s2, 0")
        e0 = self.new("e")
        A(f"s_cbranch_scc1 {e0}")
        A(f"v_mov_b32 v4, {TAG}")
        A(f"buffer_store_dword v4, v2, s[16:19], 0 offen offset:{EP_OFF}")
        self.label(e0)
        self.setexec(-1)
        self.stamp(10)
        self.label("L_cend")
        if self.stamps:
            A("v_lshlrev_b32 v2, 2, v0")
            A("s_lshl_b32 s31, s2, 8")
            A(f"s_add_u32 s31, s31, {ST_OFF}")
            A("buffer_store_dword v250, v2, s[16:19], s31 offen")
        A("s_branch L_end")

    def build(self):
        A = self.A
        L = self.L
        L.append(HEADER.rstrip())
        L.append(f"; @launch grid=({NWG},1,1) block=({NW*64},1,1) lds={LDS_SIZE}")
        L.append('.amdgcn_target "amdgcn-amd-amdhsa--gfx950"')
        L.append(".text")
        L.append(f".globl {NAME}_kernel")
        L.append(".p2align 8")
        L.append(f".type {NAME}_kernel,@function")
        L.append(f"{NAME}_kernel:")
        A(f"s_cmp_ge_u32 s2, {NWG}")
        A("s_cbranch_scc1 L_end")
        A("s_load_dwordx16 s[36:51], s[0:1], 0")
        A("s_load_dwordx8 s[52:59], s[0:1], 64")
        A("v_lshrrev_b32 v1, 6, v0")
        A("v_and_b32 v0, 63, v0")
        A("s_lshr_b32 s4, s2, 5")
        A("v_readfirstlane_b32 s3, v1")
        A("s_and_b32 s5, s2, 31")
        A("s_and_b32 s6, s2, 7")
        A("s_lshr_b32 s7, s2, 3")
        A("s_and_b32 s7, s7, 3")
        A("s_lshr_b32 s29, s2, 2")
        A("s_lshr_b32 s33, s5, 2")
        A("s_lshl_b32 s33, s33, 3")
        A("s_add_u32 s33, s33, s4")
        A("s_and_b32 s30, s2, 3")
        A("s_mov_b32 s28, 1")
        A("s_cmp_eq_u32 s30, 0")
        A("s_cselect_b32 s28, 0, s28")
        A("s_cmp_lt_u32 s33, 28")
        A("s_cselect_b32 s31, 2, 1")
        A("s_cmp_eq_u32 s30, 1")
        A("s_cselect_b32 s28, s31, s28")
        if self.allN: A("s_mov_b32 s28, 1")
        A(f"s_mov_b32 s60, {hex(f2u(CEXP))}")
        if self.stamps:
            A("v_mov_b32 v250, 0")
        A("s_waitcnt lgkmcnt(0)")
        A(f"s_load_dword s35, s[58:59], {EP_OFF}")
        A("s_lshl_b32 s30, s4, 25")
        A("s_add_u32 s8, s38, s30")
        A("s_addc_u32 s9, s39, 0")
        A("s_and_b32 s9, s9, 0xffff")
        A("s_mov_b32 s10, 0x2000000")
        A("s_mov_b32 s11, 0x00020000")
        A("s_add_u32 s12, s40, s30")
        A("s_addc_u32 s13, s41, 0")
        A("s_and_b32 s13, s13, 0xffff")
        A("s_mov_b32 s14, 0x2000000")
        A("s_mov_b32 s15, 0x00020000")
        self.srd(16, 58, WS_SIZE)
        A(f"s_cmp_eq_u32 s3, {NWK}")
        A("s_cbranch_scc1 L_control")
        self.worker()
        self.ffn_wave()
        self.control()
        self.label("L_end")
        A("s_endpgm")
        L.append('.section .rodata,"a"')
        L.append(".p2align 6")
        L.append(f".amdhsa_kernel {NAME}_kernel")
        L.append("  .amdhsa_next_free_vgpr 256")
        L.append("  .amdhsa_next_free_sgpr 100")
        L.append("  .amdhsa_accum_offset 256")
        L.append("  .amdhsa_group_segment_fixed_size 0")
        L.append("  .amdhsa_kernarg_size 96")
        L.append("  .amdhsa_user_sgpr_count 2")
        L.append("  .amdhsa_user_sgpr_kernarg_segment_ptr 1")
        L.append("  .amdhsa_system_sgpr_workgroup_id_x 1")
        L.append(".end_amdhsa_kernel")
        return "\n".join(L) + "\n"

if __name__ == "__main__":
    out = sys.argv[1]
    kw = json.loads(sys.argv[2]) if len(sys.argv) > 2 else {}
    open(out, "w").write(Gen(**kw).build())
```

```python
import sys, json, struct
NAME = "parallel_sum__gqa_block_cached__glu_gated_reglu__decode"
HEADER = open("cdna_kernels/%s.s.ref" % NAME).read().split("; Override launch geometry")[0]

NWG = 256
NWK = 7
NW = NWK + 1
EP_OFF = 0x0
Q_OFF = 0x1000
CTR_OFF = 0x8000
REC_OFF = 0x10000
REC_STRIDE = 8192
YP_OFF = 0x210000
YP_STRIDE = 3584
ST_OFF = 0x380000
WS_SIZE = 0x800000
L_CNT = 0
L_QF = 4
L_TBL = 64
L_XD = 5376
L_Q = 7168
L_HD = 8192
L_P = 8448
L_M = L_P + 8192
L_R = L_M + NWK * 2304
LDS_SIZE = L_R + 64
CEXP = 0.09016844005556021
def f2u(f): return struct.unpack("<I", struct.pack("<f", f))[0]

NSTAT = 3
SPR = 4 * NWK * NSTAT
BT = 4
TAG = "s34"

class Gen:
    def __init__(self, RS=1, stamps=False, lead=1, Q=1, sleep=1, PF=1, ND=4, PF0=2, noq=False, nocomp=False, allN=False, nowo=False, direct=False, warm=False):
        self.L = []
        self.warm = warm; self.direct = direct; self.allN = allN; self.nowo = nowo; self.noq = noq; self.nocomp = nocomp; self.PF = PF; self.ND = ND; self.PF0 = PF0; self.RS = RS; self.stamps = stamps; self.lead = lead; self.Q = Q; self.sleep = sleep
        self.uid = 0
    def A(self, s): self.L.append("  " + s)
    def C(self, s): self.L.append("  ; " + s)
    def label(self, s): self.L.append(s + ":")
    def nop(self, n):
        while n > 0:
            k = min(n, 16); self.A(f"s_nop {k-1}"); n -= k
    def setexec(self, m):
        if m == -1 or 0 <= m <= 64:
            self.A(f"s_mov_b64 exec, {m}")
        else:
            self.A(f"s_mov_b32 exec_lo, {hex(m & 0xffffffff)}")
            self.A(f"s_mov_b32 exec_hi, {hex(m >> 32)}")
    def new(self, p):
        self.uid += 1
        return f"L_{p}_{self.uid}"
    def stamp(self, k):
        if not self.stamps: return
        A = self.A
        A("s_memrealtime s[90:91]")
        A("s_waitcnt lgkmcnt(0)")
        A(f"v_writelane_b32 v250, s90, {2*k}")
        A(f"v_writelane_b32 v250, s91, {2*k+1}")
    def allreduce(self, op, v, tmp, steps=("q1", "q2", "hm", "rm", "p16", "p32")):
        A = self.A
        for st in steps:
            if st in ("q1", "q2", "hm", "rm", "ror4", "ror8"):
                mod = {"q1": "quad_perm:[1,0,3,2]", "q2": "quad_perm:[2,3,0,1]", "hm": "row_half_mirror", "rm": "row_mirror",
                       "ror4": "row_ror:4", "ror8": "row_ror:8"}[st]
                self.nop(2)
                A(f"v_{op}_f32_dpp {v}, {v}, {v} {mod} row_mask:0xf bank_mask:0xf")
            else:
                A(f"v_mov_b32 {tmp}, {v}")
                self.nop(2)
                A(f"v_permlane{'16' if st == 'p16' else '32'}_swap_b32 {tmp}, {v}")
                self.nop(1)
                A(f"v_{op}_f32 {v}, {tmp}, {v}")
    def allreduce_multi(self, op, vs, tmps, steps):
        A = self.A
        n = len(vs)
        assert n >= 3
        self.nop(2)
        for st in steps:
            if st in ("q1", "q2", "hm", "rm", "ror4", "ror8"):
                mod = {"q1": "quad_perm:[1,0,3,2]", "q2": "quad_perm:[2,3,0,1]", "hm": "row_half_mirror", "rm": "row_mirror",
                       "ror4": "row_ror:4", "ror8": "row_ror:8"}[st]
                for v in vs:
                    A(f"v_{op}_f32_dpp {v}, {v}, {v} {mod} row_mask:0xf bank_mask:0xf")
            else:
                for v, t in zip(vs, tmps): A(f"v_mov_b32 {t}, {v}")
                self.nop(2)
                for v, t in zip(vs, tmps): A(f"v_permlane{'16' if st == 'p16' else '32'}_swap_b32 {t}, {v}")
                self.nop(1)
                for v, t in zip(vs, tmps): A(f"v_{op}_f32 {v}, {t}, {v}")
    def srd(self, s, ptr, size):
        A = self.A
        A(f"s_mov_b32 s{s}, s{ptr}")
        A(f"s_and_b32 s{s+1}, s{ptr+1}, 0xffff")
        A(f"s_mov_b32 s{s+2}, {size}")
        A(f"s_mov_b32 s{s+3}, 0x00020000")
    def bf16r(self, v):
        self.A(f"v_cvt_pk_bf16_f32 {v}, {v}, {v}")
        self.A(f"v_and_b32 {v}, 0xffff0000, {v}")

    BUF = {0: 64, 1: 128, 2: 192}
    KOFF = [(c >> 1) * 2048 + (c & 1) * 256 for c in range(8)]
    def ld_tile(self, kind, buf, sreg):
        b = self.BUF[buf] + (0 if kind == "K" else 32)
        vr = ("v4", "v5") if kind == "K" else ("v6", "v7")
        srd = "s[8:11]" if kind == "K" else "s[12:15]"
        for c in range(8):
            o = self.KOFF[c]; v = vr[0]
            if o >= 4096: o -= 4096; v = vr[1]
            self.A(f"buffer_load_dwordx4 v[{b+4*c}:{b+4*c+3}], {v}, {srd}, {sreg} offen offset:{o} nt")
    def qk(self, buf):
        b = self.BUF[buf]
        for u in range(2):
            for r in range(4):
                c = 2 * r + u
                src = "0" if u == 0 else f"v[{32+4*r}:{35+4*r}]"
                self.A(f"v_mfma_f32_16x16x32_bf16 v[{32+4*r}:{35+4*r}], v[{b+4*c}:{b+4*c+3}], v[{12+4*u}:{15+4*u}], {src}")
    def softmax(self, rare_blocks):
        A = self.A
        if self.nocomp: return
        for r in range(4):
            A(f"v_mov_b32_dpp v{48+r}, v{32+4*r} quad_perm:[0,0,0,0] row_mask:0xf bank_mask:0xf")
        for k in range(1, 4):
            for r in range(4):
                A(f"v_add_f32_dpp v{48+r}, v{32+4*r+k}, v{48+r} quad_perm:[{k},{k},{k},{k}] row_mask:0xf bank_mask:0xf")
        A("v_cvt_pk_bf16_f32 v52, v48, v49")
        A("v_cvt_pk_bf16_f32 v53, v50, v51")
        A("v_lshlrev_b32 v48, 16, v52")
        A("v_and_b32 v49, 0xffff0000, v52")
        A("v_lshlrev_b32 v50, 16, v53")
        A("v_and_b32 v51, 0xffff0000, v53")
        A("v_max3_f32 v52, v48, v49, v50")
        A("v_max_f32 v52, v52, v51")
        A("v_cmp_gt_f32 vcc, v52, v28")
        rare = self.new("rare"); back = self.new("back")
        self.nop(1)
        A(f"s_cbranch_vccnz {rare}")
        self.label(back)
        for r in range(4):
            A(f"v_fma_f32 v{52+r}, v{48+r}, s60, -v29")
        for r in range(4):
            A(f"v_exp_f32 v{52+r}, v{52+r}")
        A("s_nop 0")
        for r in range(4):
            A(f"v_cvt_pk_bf16_f32 v{56+r}, v{52+r}, v{52+r}")
        A("v_add_f32 v52, v52, v53")
        A("v_add_f32 v54, v54, v55")
        A("v_add_f32 v30, v30, v52")
        A("v_add_f32 v30, v30, v54")
        rare_blocks.append((rare, back))
    def rare_block(self, rare, back):
        A = self.A
        self.label(rare)
        self.allreduce("max", "v52", "v53", steps=("p16", "p32"))
        A("v_max_f32 v52, v52, v28")
        A("v_sub_f32 v53, v28, v52")
        A("v_mul_f32 v53, s60, v53")
        A("v_exp_f32 v53, v53")
        A("v_mov_b32 v28, v52")
        A("v_mul_f32 v29, s60, v52")
        A("v_mul_f32 v30, v30, v53")
        A("v_readlane_b32 s62, v53, 0")
        A("v_readlane_b32 s63, v53, 8")
        self.nop(2)
        A("v_mov_b32 v54, s63")
        A("v_mov_b32 v55, s62")
        A("v_cndmask_b32 v54, v54, v55, s[64:65]")
        self.nop(3)
        for k in range(8):
            A(f"v_mul_f32 v{20+k}, v{20+k}, v54")
        self.nop(2)
        A(f"s_branch {back}")
    def pv(self, buf):
        A = self.A
        b = self.BUF[buf] + 32
        for r in range(4):
            a = 32 + 4 * (r & 1)
            for k in range(4):
                A(f"v_and_b32 v{a+k}, v{8+k}, v{56+r}")
            self.nop(2)
            for u in range(2):
                c = 2 * r + u
                A(f"v_mfma_f32_16x16x32_bf16 v[{20+4*u}:{23+4*u}], v[{a}:{a+3}], v[{b+4*c}:{b+4*c+3}], v[{20+4*u}:{23+4*u}]")
        self.wstamp()
    def wstamp(self):
        if not self.stamps: return
        A = self.A
        A("s_memrealtime s[90:91]")
        A("s_waitcnt lgkmcnt(0)")
        A("s_mov_b32 m0, s94")
        A("s_nop 0")
        A("v_writelane_b32 v63, s90, m0")
        A("v_writelane_b32 v1, s95, m0")
        A("s_mov_b32 s95, s69")
        A("s_add_u32 s94, s94, 1")
    def pop_issue(self):
        self.setexec(1)
        self.A("ds_add_rtn_u32 v31, v60, v61")
        self.setexec(-1)
    def pop_resolve(self, endlabel):
        A = self.A
        A("s_waitcnt lgkmcnt(0)")
        A("v_readfirstlane_b32 s66, v31")
        self.nop(2)
        A("s_lshr_b32 s67, s66, 2")
        A("s_lshl_b32 s67, s67, 2")
        A(f"s_add_u32 s67, s67, {L_TBL}")
        A("v_mov_b32 v62, s67")
        spin = self.new("spin")
        self.label(spin)
        A("ds_read_b32 v31, v62")
        A("s_waitcnt lgkmcnt(0)")
        A("v_readfirstlane_b32 s68, v31")
        self.nop(2)
        A("s_cmp_eq_u32 s68, -1")
        A(f"s_cbranch_scc1 {spin}")
        A("s_and_b32 s66, s66, 3")
        A("s_add_u32 s66, s66, s68")
        A("s_cmp_ge_u32 s66, 4096")
        A(f"s_cbranch_scc1 {endlabel}")
        A("s_lshl_b32 s69, s66, 13")
    def gemv_strip(self, breg, acc, nt=14):
        A = self.A
        for t in range(nt):
            a = 48 + 4 * (t & 1)
            for k in range(4):
                A(f"v_and_b32 v{a+k}, v{8+k}, v{32+t}")
            self.nop(2)
            src = "0" if t == 0 else f"v[{acc}:{acc+3}]"
            A(f"v_mfma_f32_16x16x32_bf16 v[{acc}:{acc+3}], v[{a}:{a+3}], v[{breg+4*t}:{breg+4*t+3}], {src}")
    def masks(self):
        A = self.A
        A("v_and_b32 v1, 1, v0")
        A("v_lshlrev_b32 v1, 4, v1")
        A("v_mov_b32 v31, 0xffff")
        A("v_lshlrev_b32 v31, v1, v31")
        A("v_bfe_u32 v1, v0, 1, 2")
        for k in range(4):
            A(f"v_cmp_eq_u32 vcc, {k}, v1")
            self.nop(2)
            A(f"v_cndmask_b32 v{8+k}, 0, v31, vcc")
    def get_tag(self):
        self.A("s_waitcnt lgkmcnt(0)")
        self.A(f"s_add_u32 {TAG}, s35, 1")

    def ln(self):
        A = self.A
        for k in range(4):
            A(f"v_lshlrev_b32 v{12+2*k}, 16, v{8+k}")
            A(f"v_and_b32 v{13+2*k}, 0xffff0000, v{8+k}")
        A("v_add_f32 v20, v12, v13")
        for k in range(2, 8):
            A(f"v_add_f32 v20, v20, v{12+k}")
        self.allreduce("add", "v20", "v21")
        A(f"v_mul_f32 v20, {hex(f2u(1.0/448.0))}, v20")
        A("v_cmp_gt_u32 vcc, 56, v0")
        A("v_mov_b32 v22, 0")
        for k in range(8):
            A(f"v_sub_f32 v23, v{12+k}, v20")
            A("v_fmac_f32 v22, v23, v23")
        A("v_cndmask_b32 v22, 0, v22, vcc")
        self.allreduce("add", "v22", "v21")
        A(f"v_mul_f32 v22, {hex(f2u(1.0/448.0))}, v22")
        self.bf16r("v22")
        self.bf16r("v20")
        A(f"v_add_f32 v22, {hex(f2u(1e-5))}, v22")
        self.bf16r("v22")
        A("v_sqrt_f32 v22, v22")
        A("s_nop 0")
        self.bf16r("v22")
        A("v_rcp_f32 v23, v22")
        A("s_nop 0")
        for k in range(8):
            A(f"v_sub_f32 v{12+k}, v{12+k}, v20")
            self.bf16r(f"v{12+k}")
            A(f"v_mul_f32 v24, v{12+k}, v23")
            A(f"v_fma_f32 v25, -v24, v22, v{12+k}")
            A(f"v_fma_f32 v24, v25, v23, v24")
            A(f"v_cvt_pk_bf16_f32 v{12+k}, v24, v24")
        A("v_lshlrev_b32 v26, 5, v0")
        self.setexec(0x00ffffffffffffff)
        A(f"ds_write_b128 v26, v[12:15] offset:{L_XD}")
        A(f"ds_write_b128 v26, v[16:19] offset:{L_XD+16}")
        self.setexec(-1)
        A("s_waitcnt lgkmcnt(0)")

    def ffn_wave(self):
        A = self.A; C = self.C
        C("FFN strip by one wave: gate/up (64 columns), h, down projection")
        self.label("L_ffn")
        self.srd(20, 36, 896)
        A("v_lshlrev_b32 v1, 4, v0")
        A("buffer_load_dwordx4 v[8:11], v1, s[20:23], 0 offen nt")
        self.srd(20, 48, 448 * 3584)
        self.srd(24, 50, 448 * 3584)
        A("v_lshrrev_b32 v2, 3, v0")
        A("s_mov_b32 s30, 3584")
        A("v_mul_lo_u32 v2, v2, s30")
        A("v_and_b32 v1, 7, v0")
        A("v_lshl_add_u32 v2, v1, 4, v2")
        A("s_lshl_b32 s30, s33, 7")
        GB = [64, 120, 176]
        chunks = [(m, q) for m in range(2) for q in range(4)]
        def issue(n):
            m, q = chunks[n]
            b = GB[n % 3]
            srd = "s[20:23]" if m == 0 else "s[24:27]"
            for t in range(14):
                A(f"s_add_u32 s31, s30, {(q*112 + t*8)*3584}")
                A(f"buffer_load_dwordx4 v[{b+4*t}:{b+4*t+3}], v2, {srd}, s31 offen nt")
        for n in range(3): issue(n)
        A("s_barrier")
        self.get_tag()
        A("s_waitcnt vmcnt(42)")
        self.ln()
        self.masks()
        A("v_lshrrev_b32 v3, 3, v0")
        A("v_lshlrev_b32 v3, 2, v3")
        for n in range(8):
            m, q = chunks[n]
            for t in range(14):
                A(f"ds_read_b32 v{32+t}, v3 offset:{L_XD + q*448 + t*32}")
            inflight = min(8, n + 3) - (n + 1)
            A(f"s_waitcnt vmcnt({14*inflight}) lgkmcnt(0)")
            acc = 56 if m == 0 else 60
            b = GB[n % 3]
            for t in range(14):
                a = 48 + 4 * (t & 1)
                for k in range(4):
                    A(f"v_and_b32 v{a+k}, v{8+k}, v{32+t}")
                self.nop(2)
                src = "0" if (t == 0 and q == 0) else f"v[{acc}:{acc+3}]"
                A(f"v_mfma_f32_16x16x32_bf16 v[{acc}:{acc+3}], v[{a}:{a+3}], v[{b+4*t}:{b+4*t+3}], {src}")
            if n + 3 < 8: issue(n + 3)
        self.srd(20, 52, 1792 * 896)
        A("v_and_b32 v4, 15, v0")
        A("v_lshrrev_b32 v5, 4, v0")
        A("v_mul_u32_u24 v6, 896, v5")
        A("v_lshl_add_u32 v6, v4, 4, v6")
        A("s_lshl_b32 s30, s33, 6")
        A("s_mul_i32 s30, s30, 896")
        DB = [64, 128, 192]
        def issue_d(n):
            b = DB[n % 3]
            for tt in range(4):
                A(f"s_add_u32 s31, s30, {(n*4+tt)*4*896}")
                for cb in range(4):
                    r = b + (tt * 4 + cb) * 4
                    A(f"buffer_load_dwordx4 v[{r}:{r+3}], v6, s[20:23], s31 offen offset:{cb*256} nt")
        for n in range(3): issue_d(n)
        A("v_lshlrev_b32 v7, 4, v0")
        self.nop(4)
        A(f"ds_write_b128 v7, v[56:59] offset:{L_P}")
        A(f"ds_write_b128 v7, v[60:63] offset:{L_P+1024}")
        A("v_and_b32 v2, 7, v0")
        A("v_bfe_u32 v3, v0, 3, 1")
        A("v_lshl_add_u32 v7, v3, 4, v2")
        A("v_lshlrev_b32 v7, 4, v7")
        A("s_waitcnt lgkmcnt(0)")
        A(f"ds_read_b128 v[32:35], v7 offset:{L_P}")
        A(f"ds_read_b128 v[36:39], v7 offset:{L_P+640}")
        A(f"ds_read_b128 v[40:43], v7 offset:{L_P+1024}")
        A(f"ds_read_b128 v[44:47], v7 offset:{L_P+1024+640}")
        A("s_waitcnt lgkmcnt(0)")
        for k in range(4):
            A(f"v_add_f32 v{32+k}, v{32+k}, v{36+k}")
            A(f"v_add_f32 v{40+k}, v{40+k}, v{44+k}")
            self.bf16r(f"v{32+k}")
            self.bf16r(f"v{40+k}")
            A(f"v_max_f32 v{32+k}, 0, v{32+k}")
            A(f"v_mul_f32 v{32+k}, v{32+k}, v{40+k}")
            A(f"v_cvt_pk_bf16_f32 v{32+k}, v{32+k}, v{32+k}")
        A("v_lshlrev_b32 v2, 5, v2")
        A("v_lshl_add_u32 v2, v3, 4, v2")
        self.setexec(0xffff)
        A(f"ds_write_b128 v2, v[32:35] offset:{L_HD}")
        self.setexec(-1)
        A("s_waitcnt lgkmcnt(0)")
        A("v_lshlrev_b32 v3, 2, v5")
        for t in range(16):
            A(f"ds_read_b32 v{12+t}, v3 offset:{L_HD + t*16}")
        A("s_waitcnt lgkmcnt(0)")
        for n in range(4):
            inflight = min(4, n + 3) - (n + 1)
            A(f"s_waitcnt vmcnt({16*inflight})")
            b = DB[n % 3]
            for tt in range(4):
                t = n * 4 + tt
                a = 48 + 4 * (t & 1)
                for k in range(4):
                    A(f"v_and_b32 v{a+k}, v{8+k}, v{12+t}")
                self.nop(2)
                for cb in range(4):
                    r = b + (tt * 4 + cb) * 4
                    src = "0" if t == 0 else f"v[{32+4*cb}:{35+4*cb}]"
                    A(f"v_mfma_f32_16x16x32_bf16 v[{32+4*cb}:{35+4*cb}], v[{a}:{a+3}], v[{r}:{r+3}], {src}")
            if n + 3 < 4: issue_d(n + 3)
        for cb in range(4):
            A(f"v_mov_b32 v{65+4*cb}, {TAG}"); A(f"v_mov_b32 v{67+4*cb}, {TAG}")
        A("v_cmp_lt_u32 s[78:79], 31, v0")
        A("v_lshlrev_b32 v6, 6, v4")
        A("v_and_b32 v7, 1, v5")
        A("v_lshl_add_u32 v6, v7, 5, v6")
        A("v_lshrrev_b32 v7, 1, v5")
        A("v_lshl_add_u32 v6, v7, 4, v6")
        A("s_add_u32 s31, s33, 256")
        A(f"s_mul_i32 s31, s31, {YP_STRIDE}")
        A(f"s_add_u32 s31, s31, {YP_OFF}")
        self.nop(2)
        for cb in range(4):
            A(f"v_cndmask_b32 v{64+4*cb}, v{32+4*cb}, v{34+4*cb}, s[78:79]")
            A(f"v_cndmask_b32 v{66+4*cb}, v{33+4*cb}, v{35+4*cb}, s[78:79]")
            if cb == 3: self.setexec(0x00ff00ff00ff00ff)
            A(f"buffer_store_dwordx4 v[{64+4*cb}:{67+4*cb}], v6, s[16:19], s31 offen offset:{cb*1024} sc1")
        self.setexec(-1)
        A("s_waitcnt vmcnt(0)")
        A("s_branch L_prefetch0")

    def worker(self):
        A = self.A; C = self.C
        self.label("L_worker")
        A("s_cmp_eq_u32 s28, 2")
        w0 = self.new("w")
        A(f"s_cbranch_scc0 {w0}")
        A(f"s_cmp_eq_u32 s3, {NWK-1}")
        A("s_cbranch_scc1 L_ffn")
        self.label(w0)
        A("s_cmp_eq_u32 s28, 0")
        A("s_cbranch_scc1 L_wroleQ")
        A("s_mov_b32 s32, 1")
        A("s_branch L_prefetch")

        C("role Q: q strip producer (64 rows per wave)")
        self.label("L_wroleQ")
        self.srd(20, 42, 448 * 8192)
        A("v_lshrrev_b32 v62, 3, v0")
        A("v_lshlrev_b32 v62, 13, v62")
        A("v_and_b32 v1, 7, v0")
        A("v_lshl_add_u32 v62, v1, 4, v62")
        A(f"s_lshl_b32 s30, s3, 19")
        A("s_lshl_b32 s31, s29, 7")
        A("s_add_u32 s30, s30, s31")
        for t in range(8):
            A(f"s_add_u32 s31, s30, {t*8*8192}")
            A(f"buffer_load_dwordx4 v[{192+4*t}:{195+4*t}], v62, s[20:23], s31 offen nt")
        self.masks()
        A("s_barrier")
        A("v_lshrrev_b32 v63, 3, v0")
        A("v_lshlrev_b32 v63, 2, v63")
        A(f"s_lshl_b32 s31, s3, 8")
        A(f"s_add_u32 s31, s31, {L_XD}")
        A("v_add_u32 v63, s31, v63")
        A("s_barrier")
        for t in range(8):
            A(f"ds_read_b32 v{32+t}, v63 offset:{t*32}")
        A("s_waitcnt vmcnt(0) lgkmcnt(0)")
        self.gemv_strip(192, 56, nt=8)
        A("v_lshlrev_b32 v62, 4, v0")
        A("s_lshl_b32 s31, s3, 10")
        A(f"s_add_u32 s31, s31, {L_P}")
        A("v_add_u32 v62, s31, v62")
        self.nop(8)
        A("ds_write_b128 v62, v[56:59]")
        A("s_waitcnt lgkmcnt(0)")
        A("s_barrier")
        A("s_barrier")
        self.label("L_prefetch0")
        A("s_mov_b32 s32, 0")

        C("staggered prefetch of the 3 static items")
        self.label("L_prefetch")
        A("v_and_b32 v2, 15, v0")
        A("v_lshrrev_b32 v3, 4, v0")
        A("v_lshrrev_b32 v4, 2, v2")
        A("v_lshlrev_b32 v4, 9, v4")
        A("v_lshl_add_u32 v4, v3, 6, v4")
        A("v_and_b32 v1, 3, v2")
        A("v_lshl_add_u32 v4, v1, 4, v4")
        A("v_add_u32 v5, 4096, v4")
        A("v_lshlrev_b32 v6, 9, v3")
        A("v_lshl_add_u32 v6, v2, 4, v6")
        A("v_add_u32 v7, 4096, v6")
        A("s_lshl_b32 s61, s6, 9")
        A(f"s_mul_i32 s30, s7, {NWK}")
        A("s_add_u32 s61, s61, s30")
        A("s_add_u32 s61, s61, s3")
        A("s_lshl_b32 s61, s61, 13")
        A(f"s_add_u32 s70, s61, {4*NWK*8192}")
        A(f"s_add_u32 s71, s61, {8*NWK*8192}")
        seq = [("K", 0, "s61"), ("V", 0, "s61"), ("K", 1, "s70"), ("V", 1, "s70"), ("K", 2, "s71"), ("V", 2, "s71")]
        first = self.PF0
        for n in range(first): self.ld_tile(*seq[n])
        A("s_cmp_eq_u32 s32, 0")
        w1 = self.new("w")
        A(f"s_cbranch_scc1 {w1}")
        A("s_barrier")
        self.label(w1)
        self.masks()
        self.get_tag()
        for n in range(first, 6):
            A(f"s_waitcnt vmcnt({8*(self.PF-1)})")
            self.ld_tile(*seq[n])
        self.Qinit = [("K", 2, 2), ("V", 2, 2)][2 - self.PF:]
        A(f"v_mov_b32 v62, {L_QF}")
        sq = self.new("spinq")
        self.label(sq)
        A("ds_read_b32 v31, v62")
        A("s_waitcnt lgkmcnt(0)")
        A("v_readfirstlane_b32 s66, v31")
        self.nop(2)
        A("s_cmp_lg_u32 s66, 0")
        sqd = self.new("spinqd")
        A(f"s_cbranch_scc1 {sqd}")
        A("s_sleep 1")
        A(f"s_branch {sq}")
        self.label(sqd)
        A("v_lshrrev_b32 v62, 3, v2")
        A("v_lshlrev_b32 v62, 9, v62")
        A("v_lshl_add_u32 v62, v3, 6, v62")
        A("v_and_b32 v1, 3, v2")
        A("v_lshl_add_u32 v62, v1, 4, v62")
        A(f"ds_read_b128 v[12:15], v62 offset:{L_Q}")
        A(f"ds_read_b128 v[16:19], v62 offset:{L_Q+256}")
        for k in range(8):
            A(f"v_mov_b32 v{20+k}, 0")
        A("v_mov_b32 v28, 0xff800000")
        A("v_mov_b32 v29, 0xff800000")
        A("v_mov_b32 v30, 0")
        A(f"v_mov_b32 v60, {L_CNT}")
        A("v_mov_b32 v61, 1")
        A("s_mov_b32 s64, -1")
        A("s_mov_b32 s65, 0")
        A("s_waitcnt lgkmcnt(0)")
        if self.stamps:
            A("v_mov_b32 v63, 0")
            A("v_mov_b32 v1, 0")
            A("s_mov_b32 s94, 0")
            A("s_mov_b32 s95, -1")
            A("s_mov_b32 s69, -1")
            self.wstamp()
        rare = []
        drains = []
        Q = list(self.Qinit)
        def wait(kind, item):
            idxs = [i for i, q in enumerate(Q) if q[0] == kind and q[1] == item]
            if not idxs: return
            idx = idxs[0]
            after = len(Q) - idx - 1
            A(f"s_waitcnt vmcnt({8*after})")
            del Q[:idx + 1]
        def process(item, buf, refill, nxt, pending):
            if refill: self.pop_issue()
            wait("K", item)
            self.qk(buf)
            if refill:
                d = self.new("drain")
                drains.append((d, item, buf, list(Q), list(pending)))
                self.pop_resolve(d)
                self.ld_tile("K", buf, "s69"); Q.append(("K", nxt, buf))
            else:
                self.nop(8)
            self.softmax(rare)
            wait("V", item)
            self.pv(buf)
            if refill:
                self.ld_tile("V", buf, "s69"); Q.append(("V", nxt, buf))
        RS = self.RS
        if self.ND < NWK:
            A(f"s_cmp_ge_u32 s3, {self.ND}")
            A("s_cbranch_scc1 L_static_only")
        if self.direct:
            assert RS == 3
            Q0 = [("K", 0, 0), ("V", 0, 0), ("K", 1, 1), ("V", 1, 1), ("K", 2, 2), ("V", 2, 2)]
        else:
            nxt = 3
            pend = [(1, 1), (2, 2)]
            for n in range(3):
                rf = n < RS
                pending = [(it, b) for (it, b) in pend if it > n]
                pending += [(3 + k, k) for k in range(min(n, RS))]
                process(n, n, rf, nxt, pending)
                if rf: nxt += 1
            Q0 = [(k, it - 3, b) for (k, it, b) in Q]
        self.label("L_loop")
        Q[:] = list(Q0)
        for n in range(RS):
            pending = [(m, m) for m in range(n + 1, RS)] + [(RS + k, k) for k in range(n)]
            process(n, n, True, n + RS, pending)
        Q1 = [(k, it - RS, b) for (k, it, b) in Q]
        assert Q1 == Q0, (Q0, Q1)
        A("s_branch L_loop")
        for (d, item, buf, q, pending) in drains:
            self.label(d)
            Q[:] = list(q)
            self.nop(8)
            self.softmax(rare)
            wait("V", item)
            self.pv(buf)
            for (it, b) in pending:
                wait("K", it)
                self.qk(b)
                self.nop(8)
                self.softmax(rare)
                wait("V", it)
                self.pv(b)
            assert not Q, Q
            A("s_branch L_wfin")
        if self.ND < NWK:
            self.label("L_static_only")
            Q[:] = list(self.Qinit)
            for n in range(3):
                process(n, n, False, None, [])
            A("s_branch L_wfin")
        for (r, b) in rare:
            self.rare_block(r, b)
        self.label("L_wfin")
        if self.stamps:
            A("v_lshlrev_b32 v62, 2, v0")
            A("s_lshl_b32 s31, s2, 3")
            A("s_add_u32 s31, s31, s3")
            A("s_lshl_b32 s31, s31, 8")
            A(f"s_add_u32 s31, s31, {ST_OFF + 0x10000}")
            A("buffer_store_dword v63, v62, s[16:19], s31 offen")
            A("s_add_u32 s31, s31, 0x80000")
            A("buffer_store_dword v1, v62, s[16:19], s31 offen")
        self.allreduce("add", "v30", "v31", steps=("p16", "p32"))
        A("v_lshrrev_b32 v62, 1, v3")
        A("v_lshlrev_b32 v62, 10, v62")
        A("v_lshl_add_u32 v62, v2, 5, v62")
        A("v_and_b32 v1, 1, v3")
        A("v_lshl_add_u32 v62, v1, 4, v62")
        A(f"s_mul_i32 s31, s3, 2304")
        A(f"s_add_u32 s31, s31, {L_M}")
        A("v_add_u32 v62, s31, v62")
        self.nop(4)
        A("ds_write_b128 v62, v[20:23]")
        A("ds_write_b128 v62, v[24:27] offset:512")
        A("v_lshrrev_b32 v63, 3, v0")
        A("v_lshlrev_b32 v63, 3, v63")
        A("v_add_u32 v63, s31, v63")
        A("v_mov_b32 v29, v30")
        self.setexec(0x101)
        A("ds_write_b64 v63, v[28:29] offset:2048")
        self.setexec(-1)
        A("s_waitcnt lgkmcnt(0)")
        A("s_barrier")
        A("s_cmp_ge_u32 s2, 112")
        A("s_cbranch_scc1 L_end")
        A("s_cmp_ge_u32 s3, 4")
        A("s_cbranch_scc1 L_end")
        C("hop 2: thread t = w*64+lane polls ypart[t][4b..4b+3] granules")
        A("s_lshl_b32 s31, s3, 6")
        A("v_add_u32 v1, s31, v0")
        A(f"v_mul_u32_u24 v62, {YP_STRIDE}, v1")
        A("s_lshl_b32 s31, s2, 5")
        A(f"s_add_u32 s31, s31, {YP_OFF}")
        p = self.new("poll2"); pd = self.new("poll2d")
        self.label(p)
        A("buffer_load_dwordx4 v[32:35], v62, s[16:19], s31 offen sc1")
        A("buffer_load_dwordx4 v[36:39], v62, s[16:19], s31 offen offset:16 sc1")
        A("s_waitcnt vmcnt(0)")
        self.check_tags(["v33", "v35", "v37", "v39"], "v40")
        A(f"s_cbranch_vccz {pd}")
        if self.sleep: A(f"s_sleep {self.sleep}")
        A(f"s_branch {p}")
        self.label(pd)
        self.allreduce_multi("add", ["v32", "v34", "v36", "v38"], ["v40", "v41", "v42", "v43"], ("q1", "q2", "hm", "rm", "p16", "p32"))
        A("v_mov_b32 v33, v34"); A("v_mov_b32 v34, v36"); A("v_mov_b32 v35, v38")
        A("s_lshl_b32 s31, s3, 4")
        A(f"s_add_u32 s31, s31, {L_R}")
        A("v_mov_b32 v62, s31")
        self.setexec(1)
        A("ds_write_b128 v62, v[32:35]")
        self.setexec(-1)
        A("s_waitcnt lgkmcnt(0)")
        A("s_barrier")
        A("s_branch L_end")

    def check_tags(self, regs, tmp):
        A = self.A
        A(f"v_xor_b32 {tmp}, {TAG}, {regs[0]}")
        for r in regs[1:]:
            A(f"v_xor_b32 v63, {TAG}, {r}")
            A(f"v_or_b32 {tmp}, {tmp}, v63")
        A(f"v_cmp_ne_u32 vcc, 0, {tmp}")
        self.nop(1)

    def control(self):
        A = self.A; C = self.C
        self.label("L_control")
        self.stamp(0)
        self.srd(20, 36, 896)
        A("v_lshlrev_b32 v1, 4, v0")
        A("s_cmp_lg_u32 s28, 0")
        x0 = self.new("x")
        A(f"s_cbranch_scc1 {x0}")
        A("buffer_load_dwordx4 v[8:11], v1, s[20:23], 0 offen nt")
        self.label(x0)
        A("v_mov_b32 v4, -1"); A("v_mov_b32 v5, -1"); A("v_mov_b32 v6, -1"); A("v_mov_b32 v7, -1")
        for k in range(5):
            A(f"ds_write_b128 v1, v[4:7] offset:{L_TBL + k*1024}")
        A("v_mov_b32 v2, 0")
        A(f"v_mov_b32 v3, {1 if self.noq else 0}")
        A(f"ds_write_b64 v2, v[2:3] offset:{L_CNT}")
        A("s_waitcnt lgkmcnt(0)")
        A("s_barrier")
        self.get_tag()
        A("s_cmp_lg_u32 s28, 0")
        A("s_cbranch_scc1 L_cpollq")
        C("role Q: producer 8g zeroes the ticket counters of head g")
        A("s_and_b32 s30, s29, 7")
        A("s_cmp_lg_u32 s30, 0")
        A("s_cbranch_scc1 L_cln")
        self.setexec(0xff)
        A("v_lshlrev_b32 v3, 8, v0")
        A("s_lshl_b32 s30, s29, 8")
        A(f"s_add_u32 s31, s30, {CTR_OFF}")
        A("buffer_store_dword v2, v3, s[16:19], s31 offen sc1")
        self.setexec(-1)
        self.label("L_cln")
        A("s_waitcnt vmcnt(0)")
        self.ln()
        A("s_barrier")
        self.stamp(1)
        A("v_and_b32 v2, 7, v0")
        A("v_bfe_u32 v3, v0, 3, 1")
        A("v_lshl_add_u32 v2, v3, 4, v2")
        A("v_lshlrev_b32 v2, 4, v2")
        A(f"v_mov_b32 v17, {TAG}")
        A(f"v_mov_b32 v19, {TAG}")
        A("v_and_b32 v4, 7, v0")
        A("v_lshlrev_b32 v4, 5, v4")
        A("v_lshl_add_u32 v4, v3, 4, v4")
        A("s_lshl_b32 s31, s29, 8")
        A(f"s_add_u32 s31, s31, {Q_OFF}")
        A("s_barrier")
        for w in range(NWK):
            A(f"ds_read_b128 v[{32+8*w}:{35+8*w}], v2 offset:{L_P + w*1024}")
            A(f"ds_read_b128 v[{36+8*w}:{39+8*w}], v2 offset:{L_P + w*1024 + 640}")
        A("s_waitcnt lgkmcnt(0)")
        for k in range(4):
            A(f"v_add_f32 v{12+k}, v{32+k}, v{36+k}")
        for w in range(1, NWK):
            for k in range(4):
                A(f"v_add_f32 v{32+8*w+k}, v{32+8*w+k}, v{36+8*w+k}")
            for k in range(4):
                A(f"v_add_f32 v{12+k}, v{12+k}, v{32+8*w+k}")
        A("v_cvt_pk_bf16_f32 v16, v12, v13")
        A("v_cvt_pk_bf16_f32 v18, v14, v15")
        self.setexec(0xffff)
        A("buffer_store_dwordx4 v[16:19], v4, s[16:19], s31 offen sc1")
        self.setexec(-1)
        A("s_barrier")
        self.stamp(2)
        C("poll q granules of this head group")
        self.label("L_cpollq")
        A("v_lshlrev_b32 v2, 4, v0")
        A("s_lshl_b32 s31, s4, 11")
        A(f"s_add_u32 s31, s31, {Q_OFF}")
        p = self.new("pollq"); pd = self.new("pollqd")
        self.label(p)
        A("buffer_load_dwordx4 v[4:7], v2, s[16:19], s31 offen sc1")
        A("buffer_load_dwordx4 v[8:11], v2, s[16:19], s31 offen offset:1024 sc1")
        A("s_waitcnt vmcnt(0)")
        self.check_tags(["v5", "v7", "v9", "v11"], "v12")
        A(f"s_cbranch_vccz {pd}")
        if not self.allN: A(f"s_branch {p}")
        self.label(pd)
        self.stamp(3)
        A("v_mov_b32 v5, v6")
        A("v_mov_b32 v9, v10")
        A("v_lshlrev_b32 v3, 3, v0")
        A(f"ds_write_b64 v3, v[4:5] offset:{L_Q}")
        A(f"ds_write_b64 v3, v[8:9] offset:{L_Q+512}")
        A("v_mov_b32 v4, 1")
        A(f"v_mov_b32 v5, {L_QF}")
        A("s_waitcnt lgkmcnt(0)")
        A("ds_write_b32 v5, v4")
        self.stamp(4)
        if self.warm:
            C("touch this workgroup's hand-off lines early (stale tag) so the final stores / polls find them in the memory-side cache")
            A("v_mov_b32 v4, 0"); A("v_mov_b32 v5, s35"); A("v_mov_b32 v6, 0"); A("v_mov_b32 v7, s35")
            A("v_lshlrev_b32 v2, 4, v0")
            A(f"s_mul_i32 s31, s2, {REC_STRIDE}")
            A(f"s_add_u32 s31, s31, {REC_OFF}")
            for k in range(4):
                A(f"buffer_store_dwordx4 v[4:7], v2, s[16:19], s31 offen offset:{k*1024} sc1")
            A("s_add_u32 s31, s31, 4096")
            self.setexec(3)
            A("buffer_store_dwordx4 v[4:7], v2, s[16:19], s31 offen sc1")
            self.setexec(-1)
            A(f"s_mul_i32 s31, s2, {YP_STRIDE}")
            A(f"s_add_u32 s31, s31, {YP_OFF}")
            for k in range(3):
                A(f"buffer_store_dwordx4 v[4:7], v2, s[16:19], s31 offen offset:{k*1024} sc1")
            self.setexec(0xffffffff)
            A(f"buffer_store_dwordx4 v[4:7], v2, s[16:19], s31 offen offset:3072 sc1")
            self.setexec(-1)
        self.srd(20, 44, 4096 * 896)
        A("v_and_b32 v2, 15, v0")
        A("v_lshrrev_b32 v3, 4, v0")
        A("v_mul_u32_u24 v4, 896, v3")
        A("v_lshl_add_u32 v4, v2, 4, v4")
        A("s_lshl_b32 s30, s2, 4")
        A("s_mul_i32 s30, s30, 896")
        for t in range(4):
            A(f"s_add_u32 s31, s30, {t*4*896}")
            for cb in range(4):
                b = 128 + (t * 4 + cb) * 4
                A(f"buffer_load_dwordx4 v[{b}:{b+3}], v4, s[20:23], s31 offen offset:{cb*256} nt")
        self.masks()
        C("ticket loop")
        A("s_mov_b32 s66, 0")
        A("s_mov_b32 s67, s6")
        A(f"v_mov_b32 v12, {BT}")
        A(f"v_mov_b32 v13, {L_CNT}")
        A("s_lshl_b32 s68, s4, 11")
        A(f"s_add_u32 s68, s68, {CTR_OFF}")
        self.label("L_floop")
        A(f"s_cmp_lt_u32 s66, {self.Q}")
        A("s_cbranch_scc1 L_fgo")
        A(f"s_sub_u32 s69, s66, {self.Q}")
        A("s_lshl_b32 s69, s69, 2")
        A(f"s_add_u32 s69, s69, {self.lead}")
        self.label("L_fwait")
        A("ds_read_b32 v14, v13")
        A("s_waitcnt lgkmcnt(0)")
        A("v_readfirstlane_b32 s70, v14")
        self.nop(2)
        A("s_cmp_ge_u32 s70, s69")
        A("s_cbranch_scc1 L_fgo")
        A("s_sleep 2")
        A("s_branch L_fwait")
        self.label("L_fgo")
        A("s_lshl_b32 s71, s67, 8")
        A("v_mov_b32 v15, s71")
        self.setexec(1)
        A("buffer_atomic_add v12, v15, s[16:19], s68 offen sc0 sc1")
        A("s_waitcnt vmcnt(0)")
        A("v_readfirstlane_b32 s70, v12")
        A(f"v_mov_b32 v12, {BT}")
        self.setexec(-1)
        self.nop(2)
        A(f"s_add_u32 s70, s70, {SPR}")
        A("s_cmp_lt_u32 s70, 512")
        A("s_cbranch_scc1 L_fgot")
        A("v_lshlrev_b32 v15, 8, v0")
        self.setexec(0xff)
        A("buffer_load_dword v14, v15, s[16:19], s68 offen sc1")
        A("s_waitcnt vmcnt(0)")
        A(f"v_cmp_gt_u32 vcc, {512 - SPR}, v14")
        self.setexec(-1)
        self.nop(2)
        A("s_and_b32 s71, vcc_lo, 0xff")
        A("s_cmp_eq_u32 s71, 0")
        A("s_cbranch_scc1 L_fend")
        A("s_lshl_b32 s73, s71, 8")
        A("s_or_b32 s73, s73, s71")
        A("s_add_u32 s74, s67, 1")
        A("s_lshr_b32 s73, s73, s74")
        A("s_ff1_i32_b32 s73, s73")
        A("s_add_u32 s67, s74, s73")
        A("s_and_b32 s67, s67, 7")
        A("s_branch L_fgo")
        self.label("L_fend")
        A("s_mov_b32 s70, 4096")
        A("s_branch L_fwr")
        self.label("L_fgot")
        A("s_lshl_b32 s71, s67, 9")
        A("s_add_u32 s70, s70, s71")
        self.label("L_fwr")
        A("s_lshl_b32 s69, s66, 2")
        A(f"s_add_u32 s69, s69, {L_TBL}")
        A("v_mov_b32 v14, s70")
        A("v_mov_b32 v15, s69")
        self.setexec(1)
        A("ds_write_b32 v15, v14")
        self.setexec(-1)
        A("s_add_u32 s66, s66, 1")
        A("s_cmp_lt_u32 s70, 4096")
        A("s_cbranch_scc1 L_floop")
        self.setexec(1)
        A("ds_write_b32 v15, v14 offset:4")
        A("ds_write_b32 v15, v14 offset:8")
        self.setexec(-1)
        self.stamp(5)
        C("FFN part of hop 2 (wg < 112): sum 28 partials for columns 4b..4b+3, plus x")
        A("s_cmp_ge_u32 s2, 112")
        A("s_cbranch_scc1 L_cbt1")
        A(f"v_mul_u32_u24 v2, {YP_STRIDE}, v0")
        A("s_lshl_b32 s31, s2, 5")
        A(f"s_add_u32 s31, s31, {YP_OFF + 256*YP_STRIDE}")
        p = self.new("pollf"); pd = self.new("pollfd")
        self.setexec(0xfffffff)
        self.label(p)
        A("buffer_load_dwordx4 v[112:115], v2, s[16:19], s31 offen sc1")
        A("buffer_load_dwordx4 v[116:119], v2, s[16:19], s31 offen offset:16 sc1")
        A("s_waitcnt vmcnt(0)")
        self.check_tags(["v113", "v115", "v117", "v119"], "v12")
        A(f"s_cbranch_vccz {pd}")
        A("s_sleep 1")
        if not self.allN: A(f"s_branch {p}")
        self.label(pd)
        self.setexec(-1)
        A("v_cmp_gt_u32 vcc, 28, v0")
        self.nop(2)
        for k in range(4):
            A(f"v_cndmask_b32 v{112+2*k}, 0, v{112+2*k}, vcc")
        self.srd(20, 36, 896)
        A("s_lshl_b32 s31, s2, 3")
        A("v_mov_b32 v2, 0")
        A("buffer_load_dwordx2 v[120:121], v2, s[20:23], s31 offen nt")
        self.allreduce_multi("add", ["v112", "v114", "v116", "v118"], ["v12", "v14", "v15", "v16"], ("q1", "q2", "hm", "rm", "p16", "p32"))
        for k in range(4):
            self.bf16r(f"v{112+2*k}")
        A("s_waitcnt vmcnt(0)")
        self.label("L_cbt1")
        for k in range(8):
            A(f"v_mov_b32 v{53+2*k}, {TAG}")
        A(f"v_mov_b32 v49, {TAG}"); A(f"v_mov_b32 v51, {TAG}")
        A(f"v_mov_b32 v69, {TAG}"); A(f"v_mov_b32 v71, {TAG}")
        A("v_lshlrev_b32 v3, 4, v0")
        A("v_lshlrev_b32 v4, 3, v0")
        A(f"v_mov_b32 v2, {L_M + 2048}")
        A(f"s_mul_i32 s31, s2, {REC_STRIDE}")
        A(f"s_add_u32 s31, s31, {REC_OFF}")
        A("s_add_u32 s30, s31, 4096")
        A("v_and_b32 v5, 1, v0")
        A("v_cmp_eq_u32 s[78:79], 1, v5")
        A("s_waitcnt lgkmcnt(0)")
        A("s_barrier")
        self.stamp(6)
        C("merge the worker partials")
        HB = 72; DBs = 128 + 64
        for w in range(NWK):
            A(f"ds_read_b128 v[{HB+4*w}:{HB+3+4*w}], v2 offset:{w*2304}")
        for k in range(4):
            for w in range(NWK):
                b = DBs + (k * NWK + w) * 2
                A(f"ds_read_b64 v[{b}:{b+1}], v4 offset:{L_M + w*2304 + k*512}")
        A("s_waitcnt lgkmcnt(0)")
        for h in range(2):
            m = lambda w: f"v{HB+4*w+2*h}"
            l = lambda w: f"v{HB+1+4*w+2*h}"
            M = ("v48", "v68")[h]; Lr = ("v50", "v70")[h]
            A(f"v_max_f32 {M}, {m(0)}, {m(1)}")
            for w in range(2, NWK):
                A(f"v_max_f32 {M}, {M}, {m(w)}")
            for w in range(NWK):
                A(f"v_sub_f32 {m(w)}, {m(w)}, {M}")
                A(f"v_mul_f32 {m(w)}, s60, {m(w)}")
                A(f"v_exp_f32 {m(w)}, {m(w)}")
            A("s_nop 0")
            A(f"v_mul_f32 {Lr}, {m(0)}, {l(0)}")
            for w in range(1, NWK):
                A(f"v_fmac_f32 {Lr}, {m(w)}, {l(w)}")
        for k in range(4):
            h = k >> 1
            for w in range(NWK):
                for e in range(2):
                    d = 52 + 4 * k + 2 * e
                    op = "v_mul_f32" if w == 0 else "v_fmac_f32"
                    A(f"{op} v{d}, v{HB+4*w+2*h}, v{DBs + (k*NWK+w)*2 + e}")
            A(f"buffer_store_dwordx4 v[{52+4*k}:{55+4*k}], v3, s[16:19], s31 offen offset:{k*1024} sc1")
        A("v_cndmask_b32 v48, v48, v68, s[78:79]")
        A("v_cndmask_b32 v50, v50, v70, s[78:79]")
        self.setexec(0xff)
        A("buffer_store_dwordx4 v[48:51], v3, s[16:19], s30 offen sc1")
        self.setexec(-1)
        self.stamp(7)
        C("hop 1: poll 32 records: lane l: rec 8n + (l>>3), piece l&7 (2 granules)")
        A("v_lshrrev_b32 v2, 3, v0")
        A(f"v_lshlrev_b32 v2, 13, v2")
        A("v_and_b32 v3, 7, v0")
        A("v_lshl_add_u32 v4, v3, 4, v2")
        A("s_lshl_b32 s30, s4, 18")
        A(f"s_add_u32 s30, s30, {REC_OFF}")
        A("s_lshl_b32 s31, s5, 7")
        A("s_add_u32 s31, s31, s30")
        A("s_lshr_b32 s74, s5, 4")
        A("s_lshl_b32 s74, s74, 4")
        A("s_add_u32 s74, s74, s30")
        A("s_add_u32 s74, s74, 4096")
        for n in range(1, 4):
            A(f"s_add_u32 s{75+2*(n-1)}, s31, {n*0x10000}")
            A(f"s_add_u32 s{76+2*(n-1)}, s74, {n*0x10000}")
        p = self.new("poll1"); pd = self.new("poll1d")
        if self.stamps: A("s_mov_b32 s93, 0")
        self.label(p)
        if self.stamps: A("s_add_u32 s93, s93, 1")
        for n in range(4):
            so = "s31" if n == 0 else f"s{75+2*(n-1)}"
            sh = "s74" if n == 0 else f"s{76+2*(n-1)}"
            A(f"buffer_load_dwordx4 v[{32+4*n}:{35+4*n}], v4, s[16:19], {so} offen sc1")
            A(f"buffer_load_dwordx4 v[{64+4*n}:{67+4*n}], v2, s[16:19], {sh} offen sc1")
        A("s_waitcnt vmcnt(0)")
        if self.stamps:
            A("s_memrealtime s[90:91]")
            A("s_waitcnt lgkmcnt(0)")
            A("s_add_u32 s92, s93, 31")
            A("s_mov_b32 m0, s92")
            A("s_nop 0")
            A("v_writelane_b32 v250, s90, m0")
        self.check_tags([f"v{33+2*k}" for k in range(8)] + [f"v{65+2*k}" for k in range(8)], "v12")
        A(f"s_cbranch_vccz {pd}")
        if self.sleep: A(f"s_sleep {self.sleep}")
        A(f"s_branch {p}")
        self.label(pd)
        self.stamp(8)
        if self.stamps: A("v_writelane_b32 v250, s93, 30")
        A("v_max3_f32 v48, v64, v68, v72")
        A("v_max_f32 v48, v48, v76")
        self.allreduce("max", "v48", "v49", steps=("ror8", "p16", "p32"))
        for n in range(4):
            A(f"v_sub_f32 v{64+4*n}, v{64+4*n}, v48")
            A(f"v_mul_f32 v{64+4*n}, s60, v{64+4*n}")
            A(f"v_exp_f32 v{64+4*n}, v{64+4*n}")
        A("s_nop 0")
        A("v_mul_f32 v50, v64, v66"); A("v_mul_f32 v51, v64, v32"); A("v_mul_f32 v52, v64, v34")
        for n in range(1, 4):
            A(f"v_fmac_f32 v50, v{64+4*n}, v{66+4*n}")
            A(f"v_fmac_f32 v51, v{64+4*n}, v{32+4*n}")
            A(f"v_fmac_f32 v52, v{64+4*n}, v{34+4*n}")
        self.allreduce_multi("add", ["v50", "v51", "v52"], ["v53", "v54", "v55"], ("ror8", "p16", "p32"))
        A("v_rcp_f32 v53, v50")
        A("s_nop 0")
        for r in ("v51", "v52"):
            A(f"v_mul_f32 v54, {r}, v53")
            A(f"v_fma_f32 v55, -v54, v50, {r}")
            A(f"v_fma_f32 {r}, v55, v53, v54")
        A("v_lshrrev_b32 v3, 4, v0")
        A("v_and_b32 v5, 1, v3")
        A("v_cmp_eq_u32 vcc, 1, v5"); self.nop(2)
        A("v_cndmask_b32 v51, v51, v52, vcc")
        A("v_cvt_pk_bf16_f32 v51, v51, v51")
        self.nop(2)
        for t in range(4):
            A(f"v_mov_b32_dpp v{40+t}, v51 row_newbcast:{2*t} row_mask:0x3 bank_mask:0xf")
            A(f"v_mov_b32_dpp v{40+t}, v51 row_newbcast:{2*t+1} row_mask:0xc bank_mask:0xf")
        for cb in range(4):
            A(f"v_mov_b32 v{81+4*cb}, {TAG}"); A(f"v_mov_b32 v{83+4*cb}, {TAG}")
        A("v_cmp_lt_u32 s[78:79], 31, v0")
        for t in range(4):
            a = 44 + 4 * (t & 1)
            for k in range(4):
                A(f"v_and_b32 v{a+k}, v{8+k}, v{40+t}")
            self.nop(2)
            for cb in range(4):
                b = 128 + (t * 4 + cb) * 4
                src = "0" if t == 0 else f"v[{64+4*cb}:{67+4*cb}]"
                A(f"v_mfma_f32_16x16x32_bf16 v[{64+4*cb}:{67+4*cb}], v[{a}:{a+3}], v[{b}:{b+3}], {src}")
        A("v_and_b32 v2, 15, v0")
        A("v_lshlrev_b32 v4, 6, v2")
        A("v_and_b32 v5, 1, v3")
        A("v_lshl_add_u32 v4, v5, 5, v4")
        A("v_lshrrev_b32 v5, 1, v3")
        A("v_lshl_add_u32 v4, v5, 4, v4")
        A(f"s_mul_i32 s31, s2, {YP_STRIDE}")
        A(f"s_add_u32 s31, s31, {YP_OFF}")
        self.nop(2)
        for cb in range(4):
            A(f"v_cndmask_b32 v{80+4*cb}, v{64+4*cb}, v{66+4*cb}, s[78:79]")
            A(f"v_cndmask_b32 v{82+4*cb}, v{65+4*cb}, v{67+4*cb}, s[78:79]")
            if cb == 3: self.setexec(0x00ff00ff00ff00ff)
            A(f"buffer_store_dwordx4 v[{80+4*cb}:{83+4*cb}], v4, s[16:19], s31 offen offset:{cb*1024} sc1")
        self.setexec(-1)
        self.stamp(9)
        A("s_cmp_ge_u32 s2, 112")
        A("s_cbranch_scc1 L_cend")
        self.srd(20, 54, 896)
        A("v_lshlrev_b32 v48, 16, v120"); A("v_and_b32 v49, 0xffff0000, v120")
        A("v_lshlrev_b32 v50, 16, v121"); A("v_and_b32 v51, 0xffff0000, v121")
        A(f"v_mov_b32 v2, {L_R}")
        A("s_barrier")
        for w in range(4):
            A(f"ds_read_b128 v[{32+4*w}:{35+4*w}], v2 offset:{w*16}")
        A("s_waitcnt lgkmcnt(0)")
        for k in range(4):
            A(f"v_add_f32 v{32+k}, v{32+k}, v{36+k}")
            A(f"v_add_f32 v{40+k}, v{40+k}, v{44+k}")
            A(f"v_add_f32 v{32+k}, v{32+k}, v{40+k}")
            self.bf16r(f"v{32+k}")
            A(f"v_add_f32 v{32+k}, v{48+k}, v{32+k}")
            self.bf16r(f"v{32+k}")
            A(f"v_add_f32 v{32+k}, v{32+k}, v{112+2*k}")
        A("v_cvt_pk_bf16_f32 v32, v32, v33")
        A("v_cvt_pk_bf16_f32 v33, v34, v35")
        A("s_lshl_b32 s31, s2, 3")
        A("v_mov_b32 v2, 0")
        self.setexec(1)
        A("buffer_store_dwordx2 v[32:33], v2, s[20:23], s31 offen")
        A("s_cmp_lg_u32 s2, 0")
        e0 = self.new("e")
        A(f"s_cbranch_scc1 {e0}")
        A(f"v_mov_b32 v4, {TAG}")
        A(f"buffer_store_dword v4, v2, s[16:19], 0 offen offset:{EP_OFF}")
        self.label(e0)
        self.setexec(-1)
        self.stamp(10)
        self.label("L_cend")
        if self.stamps:
            A("v_lshlrev_b32 v2, 2, v0")
            A("s_lshl_b32 s31, s2, 8")
            A(f"s_add_u32 s31, s31, {ST_OFF}")
            A("buffer_store_dword v250, v2, s[16:19], s31 offen")
        A("s_branch L_end")

    def build(self):
        A = self.A
        L = self.L
        L.append(HEADER.rstrip())
        L.append(f"; @launch grid=({NWG},1,1) block=({NW*64},1,1) lds={LDS_SIZE}")
        L.append('.amdgcn_target "amdgcn-amd-amdhsa--gfx950"')
        L.append(".text")
        L.append(f".globl {NAME}_kernel")
        L.append(".p2align 8")
        L.append(f".type {NAME}_kernel,@function")
        L.append(f"{NAME}_kernel:")
        A(f"s_cmp_ge_u32 s2, {NWG}")
        A("s_cbranch_scc1 L_end")
        A("s_load_dwordx16 s[36:51], s[0:1], 0")
        A("s_load_dwordx8 s[52:59], s[0:1], 64")
        A("v_lshrrev_b32 v1, 6, v0")
        A("v_and_b32 v0, 63, v0")
        A("s_lshr_b32 s4, s2, 5")
        A("v_readfirstlane_b32 s3, v1")
        A("s_and_b32 s5, s2, 31")
        A("s_and_b32 s6, s2, 7")
        A("s_lshr_b32 s7, s2, 3")
        A("s_and_b32 s7, s7, 3")
        A("s_lshr_b32 s29, s2, 2")
        A("s_lshr_b32 s33, s5, 2")
        A("s_lshl_b32 s33, s33, 3")
        A("s_add_u32 s33, s33, s4")
        A("s_and_b32 s30, s2, 3")
        A("s_mov_b32 s28, 1")
        A("s_cmp_eq_u32 s30, 0")
        A("s_cselect_b32 s28, 0, s28")
        A("s_cmp_lt_u32 s33, 28")
        A("s_cselect_b32 s31, 2, 1")
        A("s_cmp_eq_u32 s30, 1")
        A("s_cselect_b32 s28, s31, s28")
        if self.allN: A("s_mov_b32 s28, 1")
        A(f"s_mov_b32 s60, {hex(f2u(CEXP))}")
        if self.stamps:
            A("v_mov_b32 v250, 0")
        A("s_waitcnt lgkmcnt(0)")
        A(f"s_load_dword s35, s[58:59], {EP_OFF}")
        A("s_lshl_b32 s30, s4, 25")
        A("s_add_u32 s8, s38, s30")
        A("s_addc_u32 s9, s39, 0")
        A("s_and_b32 s9, s9, 0xffff")
        A("s_mov_b32 s10, 0x2000000")
        A("s_mov_b32 s11, 0x00020000")
        A("s_add_u32 s12, s40, s30")
        A("s_addc_u32 s13, s41, 0")
        A("s_and_b32 s13, s13, 0xffff")
        A("s_mov_b32 s14, 0x2000000")
        A("s_mov_b32 s15, 0x00020000")
        self.srd(16, 58, WS_SIZE)
        A(f"s_cmp_eq_u32 s3, {NWK}")
        A("s_cbranch_scc1 L_control")
        self.worker()
        self.ffn_wave()
        self.control()
        self.label("L_end")
        A("s_endpgm")
        L.append('.section .rodata,"a"')
        L.append(".p2align 6")
        L.append(f".amdhsa_kernel {NAME}_kernel")
        L.append("  .amdhsa_next_free_vgpr 256")
        L.append("  .amdhsa_next_free_sgpr 100")
        L.append("  .amdhsa_accum_offset 256")
        L.append("  .amdhsa_group_segment_fixed_size 0")
        L.append("  .amdhsa_kernarg_size 96")
        L.append("  .amdhsa_user_sgpr_count 2")
        L.append("  .amdhsa_user_sgpr_kernarg_segment_ptr 1")
        L.append("  .amdhsa_system_sgpr_workgroup_id_x 1")
        L.append(".end_amdhsa_kernel")
        return "\n".join(L) + "\n"

if __name__ == "__main__":
    out = sys.argv[1]
    kw = json.loads(sys.argv[2]) if len(sys.argv) > 2 else {}
    open(out, "w").write(Gen(**kw).build())
```

```python
import sys, json, struct
NAME = "parallel_sum__gqa_block_cached__glu_gated_reglu__decode"
HEADER = open("cdna_kernels/%s.s.ref" % NAME).read().split("; Override launch geometry")[0]

NWG = 256
NWK = 7
NW = NWK + 1
EP_OFF = 0x0
Q_OFF = 0x1000
CTR_OFF = 0x8000
REC_OFF = 0x10000
REC_STRIDE = 8192
YP_OFF = 0x210000
YP_STRIDE = 3584
ST_OFF = 0x380000
WS_SIZE = 0x800000
L_CNT = 0
L_QF = 4
L_TBL = 64
TBL_KB = 14
L_XD = L_TBL + TBL_KB * 1024 + 192
L_Q = L_XD + 1792
L_HD = L_Q + 1024
L_P = L_HD + 256
L_M = L_P + 8192
L_R = L_M + NWK * 2304
LDS_SIZE = L_R + 64
CEXP = 0.09016844005556021
def f2u(f): return struct.unpack("<I", struct.pack("<f", f))[0]

NSTAT = 3
SPR = 4 * NWK * NSTAT
BT = 4
TAG = "s34"

class Gen:
    def __init__(self, RS=1, stamps=False, lead=1, Q=1, sleep=1, PF=1, ND=4, PF0=2, noq=False, nocomp=False, allN=False, nowo=False, direct=False, warm=False, dbgst=False, B=4, ackst=False, X=-8, LVL=3, LVLE=3, pipe=False, sleep0=0, sleep2=1, RX=448, latewo=True, masked=False):
        self.L = []
        self.masked = masked; self.latewo = latewo; self.RX = RX; self.pipe = pipe; self.sleep0 = sleep0; self.sleep2 = sleep2; self.X = X; self.LVL = LVL; self.LVLE = LVLE; self.ackst = ackst; self.B = B; self.LB = B.bit_length() - 1; self.dbgst = dbgst; self.warm = warm; self.direct = direct; self.allN = allN; self.nowo = nowo; self.noq = noq; self.nocomp = nocomp; self.PF = PF; self.ND = ND; self.PF0 = PF0; self.RS = RS; self.stamps = stamps; self.lead = lead; self.Q = Q; self.sleep = sleep
        self.uid = 0
    def A(self, s): self.L.append("  " + s)
    def C(self, s): self.L.append("  ; " + s)
    def label(self, s): self.L.append(s + ":")
    def nop(self, n):
        while n > 0:
            k = min(n, 16); self.A(f"s_nop {k-1}"); n -= k
    def setexec(self, m):
        if m == -1 or 0 <= m <= 64:
            self.A(f"s_mov_b64 exec, {m}")
        else:
            self.A(f"s_mov_b32 exec_lo, {hex(m & 0xffffffff)}")
            self.A(f"s_mov_b32 exec_hi, {hex(m >> 32)}")
    def new(self, p):
        self.uid += 1
        return f"L_{p}_{self.uid}"
    def stamp(self, k):
        A = self.A
        if not (self.stamps or self.dbgst): return
        A("s_memrealtime s[90:91]")
        A("s_waitcnt lgkmcnt(0)")
        A(f"v_writelane_b32 v127, s90, {2*k}")
        A(f"v_writelane_b32 v127, s91, {2*k+1}")
    def dbg_dump(self):
        A = self.A
        self.srd(84, 56, 256)
        A("s_mov_b64 exec, 1")
        for k, m in {0: (0, 1), 3: (None, 2), 5: (3, 4), 6: (10, 5), 7: (None, 6), 8: (None, 7), 9: (None, 8), 10: (None, 9), 4: (None, 11), 2: (None, 12)}.items():
            A(f"v_readlane_b32 s90, v127, {2*k}")
            A("s_nop 3")
            if m[0] is not None:
                A("s_not_b32 s91, s90")
                A("v_mov_b32 v122, s91")
                A(f"v_mov_b32 v123, {4*m[0]}")
                A("buffer_atomic_umax v122, v123, s[84:87], 0 offen sc1")
                A("s_nop 2")
            A("v_mov_b32 v124, s90")
            A(f"v_mov_b32 v125, {4*m[1]}")
            A("buffer_atomic_umax v124, v125, s[84:87], 0 offen sc1")
            A("s_nop 2")
        A("s_mov_b64 exec, -1")
    def allreduce(self, op, v, tmp, steps=("q1", "q2", "hm", "rm", "p16", "p32")):
        A = self.A
        for st in steps:
            if st in ("q1", "q2", "hm", "rm", "ror4", "ror8"):
                mod = {"q1": "quad_perm:[1,0,3,2]", "q2": "quad_perm:[2,3,0,1]", "hm": "row_half_mirror", "rm": "row_mirror",
                       "ror4": "row_ror:4", "ror8": "row_ror:8"}[st]
                self.nop(2)
                A(f"v_{op}_f32_dpp {v}, {v}, {v} {mod} row_mask:0xf bank_mask:0xf")
            else:
                A(f"v_mov_b32 {tmp}, {v}")
                self.nop(2)
                A(f"v_permlane{'16' if st == 'p16' else '32'}_swap_b32 {tmp}, {v}")
                self.nop(1)
                A(f"v_{op}_f32 {v}, {tmp}, {v}")
    def allreduce_multi(self, op, vs, tmps, steps):
        A = self.A
        n = len(vs)
        assert n >= 3
        self.nop(2)
        for st in steps:
            if st in ("q1", "q2", "hm", "rm", "ror4", "ror8"):
                mod = {"q1": "quad_perm:[1,0,3,2]", "q2": "quad_perm:[2,3,0,1]", "hm": "row_half_mirror", "rm": "row_mirror",
                       "ror4": "row_ror:4", "ror8": "row_ror:8"}[st]
                for v in vs:
                    A(f"v_{op}_f32_dpp {v}, {v}, {v} {mod} row_mask:0xf bank_mask:0xf")
            else:
                for v, t in zip(vs, tmps): A(f"v_mov_b32 {t}, {v}")
                self.nop(2)
                for v, t in zip(vs, tmps): A(f"v_permlane{'16' if st == 'p16' else '32'}_swap_b32 {t}, {v}")
                self.nop(1)
                for v, t in zip(vs, tmps): A(f"v_{op}_f32 {v}, {t}, {v}")
    def srd(self, s, ptr, size):
        A = self.A
        A(f"s_mov_b32 s{s}, s{ptr}")
        A(f"s_and_b32 s{s+1}, s{ptr+1}, 0xffff")
        A(f"s_mov_b32 s{s+2}, {size}")
        A(f"s_mov_b32 s{s+3}, 0x00020000")
    def bf16r(self, v):
        self.A(f"v_cvt_pk_bf16_f32 {v}, {v}, {v}")
        self.A(f"v_and_b32 {v}, 0xffff0000, {v}")

    BUF = {0: 64, 1: 128, 2: 192}
    KOFF = [(c >> 1) * 2048 + (c & 1) * 256 for c in range(8)]
    def ld_tile(self, kind, buf, sreg):
        b = self.BUF[buf] + (0 if kind == "K" else 32)
        vr = ("v4", "v5") if kind == "K" else ("v6", "v7")
        srd = "s[8:11]" if kind == "K" else "s[12:15]"
        for c in range(8):
            o = self.KOFF[c]; v = vr[0]
            if o >= 4096: o -= 4096; v = vr[1]
            self.A(f"buffer_load_dwordx4 v[{b+4*c}:{b+4*c+3}], {v}, {srd}, {sreg} offen offset:{o} nt")
    def qk(self, buf):
        b = self.BUF[buf]
        for u in range(2):
            for r in range(4):
                c = 2 * r + u
                src = "0" if u == 0 else f"v[{32+4*r}:{35+4*r}]"
                self.A(f"v_mfma_f32_16x16x32_bf16 v[{32+4*r}:{35+4*r}], v[{b+4*c}:{b+4*c+3}], v[{12+4*u}:{15+4*u}], {src}")
    def softmax(self, rare_blocks):
        A = self.A
        if self.nocomp: return
        for r in range(4):
            A(f"v_mov_b32_dpp v{48+r}, v{32+4*r} quad_perm:[0,0,0,0] row_mask:0xf bank_mask:0xf")
        for k in range(1, 4):
            for r in range(4):
                A(f"v_add_f32_dpp v{48+r}, v{32+4*r+k}, v{48+r} quad_perm:[{k},{k},{k},{k}] row_mask:0xf bank_mask:0xf")
        A("v_cvt_pk_bf16_f32 v52, v48, v49")
        A("v_cvt_pk_bf16_f32 v53, v50, v51")
        A("v_lshlrev_b32 v48, 16, v52")
        A("v_and_b32 v49, 0xffff0000, v52")
        A("v_lshlrev_b32 v50, 16, v53")
        A("v_and_b32 v51, 0xffff0000, v53")
        A("v_max3_f32 v52, v48, v49, v50")
        A("v_max_f32 v52, v52, v51")
        A("v_cmp_gt_f32 vcc, v52, v28")
        rare = self.new("rare"); back = self.new("back")
        self.nop(1)
        A(f"s_cbranch_vccnz {rare}")
        self.label(back)
        for r in range(4):
            A(f"v_fma_f32 v{52+r}, v{48+r}, s60, -v29")
        for r in range(4):
            A(f"v_exp_f32 v{52+r}, v{52+r}")
        A("s_nop 0")
        for r in range(4):
            A(f"v_cvt_pk_bf16_f32 v{56+r}, v{52+r}, v{52+r}")
        A("v_add_f32 v52, v52, v53")
        A("v_add_f32 v54, v54, v55")
        A("v_add_f32 v30, v30, v52")
        A("v_add_f32 v30, v30, v54")
        rare_blocks.append((rare, back))
    def rare_block(self, rare, back):
        A = self.A
        self.label(rare)
        self.allreduce("max", "v52", "v53", steps=("p16", "p32"))
        A("v_max_f32 v52, v52, v28")
        A("v_sub_f32 v53, v28, v52")
        A("v_mul_f32 v53, s60, v53")
        A("v_exp_f32 v53, v53")
        A("v_mov_b32 v28, v52")
        A("v_mul_f32 v29, s60, v52")
        A("v_mul_f32 v30, v30, v53")
        A("v_readlane_b32 s62, v53, 0")
        A("v_readlane_b32 s63, v53, 8")
        self.nop(2)
        A("v_mov_b32 v54, s63")
        A("v_mov_b32 v55, s62")
        A("v_cndmask_b32 v54, v54, v55, s[64:65]")
        self.nop(3)
        for k in range(8):
            A(f"v_mul_f32 v{20+k}, v{20+k}, v54")
        self.nop(2)
        A(f"s_branch {back}")
    def pv(self, buf):
        A = self.A
        b = self.BUF[buf] + 32
        for r in range(4):
            a = 32 + 4 * (r & 1)
            for k in range(4):
                A(f"v_and_b32 v{a+k}, v{8+k}, v{56+r}")
            self.nop(2)
            for u in range(2):
                c = 2 * r + u
                A(f"v_mfma_f32_16x16x32_bf16 v[{20+4*u}:{23+4*u}], v[{a}:{a+3}], v[{b+4*c}:{b+4*c+3}], v[{20+4*u}:{23+4*u}]")
        self.wstamp()
    def wstamp(self):
        if not self.stamps: return
        A = self.A
        A("s_memrealtime s[90:91]")
        A("s_waitcnt lgkmcnt(0)")
        A("s_mov_b32 m0, s94")
        A("s_nop 0")
        A("v_writelane_b32 v63, s90, m0")
        A("v_writelane_b32 v1, s95, m0")
        A("s_mov_b32 s95, s69")
        A("s_add_u32 s94, s94, 1")
    def pop_issue(self):
        self.setexec(1)
        self.A("ds_add_rtn_u32 v31, v60, v61")
        self.setexec(-1)
    def pop_resolve(self, endlabel):
        A = self.A
        A("s_waitcnt lgkmcnt(0)")
        self.setexec(1)
        A("v_lshlrev_b32 v62, 2, v31")
        spin = self.new("spin")
        self.label(spin)
        A(f"ds_read_b32 v31, v62 offset:{L_TBL}")
        A("s_waitcnt lgkmcnt(0)")
        A("v_readfirstlane_b32 s66, v31")
        self.nop(2)
        A("s_cmp_eq_u32 s66, -1")
        A(f"s_cbranch_scc1 {spin}")
        self.setexec(-1)
        A("s_cmp_ge_u32 s66, 4096")
        A(f"s_cbranch_scc1 {endlabel}")
        A("s_lshl_b32 s69, s66, 13")
    def gemv_strip(self, breg, acc, nt=14):
        A = self.A
        for t in range(nt):
            a = 48 + 4 * (t & 1)
            for k in range(4):
                A(f"v_and_b32 v{a+k}, v{8+k}, v{32+t}")
            self.nop(2)
            src = "0" if t == 0 else f"v[{acc}:{acc+3}]"
            A(f"v_mfma_f32_16x16x32_bf16 v[{acc}:{acc+3}], v[{a}:{a+3}], v[{breg+4*t}:{breg+4*t+3}], {src}")
    def masks(self):
        A = self.A
        A("v_and_b32 v1, 1, v0")
        A("v_lshlrev_b32 v1, 4, v1")
        A("v_mov_b32 v31, 0xffff")
        A("v_lshlrev_b32 v31, v1, v31")
        A("v_bfe_u32 v1, v0, 1, 2")
        for k in range(4):
            A(f"v_cmp_eq_u32 vcc, {k}, v1")
            self.nop(2)
            A(f"v_cndmask_b32 v{8+k}, 0, v31, vcc")
    def get_tag(self):
        self.A("s_waitcnt lgkmcnt(0)")
        self.A(f"s_add_u32 {TAG}, s35, 1")

    def ln(self):
        A = self.A
        for k in range(4):
            A(f"v_lshlrev_b32 v{12+2*k}, 16, v{8+k}")
            A(f"v_and_b32 v{13+2*k}, 0xffff0000, v{8+k}")
        A("v_add_f32 v20, v12, v13")
        for k in range(2, 8):
            A(f"v_add_f32 v20, v20, v{12+k}")
        self.allreduce("add", "v20", "v21")
        A(f"v_mul_f32 v20, {hex(f2u(1.0/448.0))}, v20")
        A("v_cmp_gt_u32 vcc, 56, v0")
        A("v_mov_b32 v22, 0")
        for k in range(8):
            A(f"v_sub_f32 v23, v{12+k}, v20")
            A("v_fmac_f32 v22, v23, v23")
        A("v_cndmask_b32 v22, 0, v22, vcc")
        self.allreduce("add", "v22", "v21")
        A(f"v_mul_f32 v22, {hex(f2u(1.0/448.0))}, v22")
        self.bf16r("v22")
        self.bf16r("v20")
        A(f"v_add_f32 v22, {hex(f2u(1e-5))}, v22")
        self.bf16r("v22")
        A("v_sqrt_f32 v22, v22")
        A("s_nop 0")
        self.bf16r("v22")
        A("v_rcp_f32 v23, v22")
        A("s_nop 0")
        for k in range(8):
            A(f"v_sub_f32 v{12+k}, v{12+k}, v20")
            self.bf16r(f"v{12+k}")
            A(f"v_mul_f32 v24, v{12+k}, v23")
            A(f"v_fma_f32 v25, -v24, v22, v{12+k}")
            A(f"v_fma_f32 v24, v25, v23, v24")
            A(f"v_cvt_pk_bf16_f32 v{12+k}, v24, v24")
        A("v_lshlrev_b32 v26, 5, v0")
        self.setexec(0x00ffffffffffffff)
        A(f"ds_write_b128 v26, v[12:15] offset:{L_XD}")
        A(f"ds_write_b128 v26, v[16:19] offset:{L_XD+16}")
        self.setexec(-1)
        A("s_waitcnt lgkmcnt(0)")

    def ffn_wave(self):
        A = self.A; C = self.C
        C("FFN strip by one wave: gate/up (64 columns), h, down projection")
        self.label("L_ffn")
        self.srd(20, 36, 896)
        A("v_lshlrev_b32 v1, 4, v0")
        A("buffer_load_dwordx4 v[8:11], v1, s[20:23], 0 offen nt")
        self.srd(20, 48, 448 * 3584)
        self.srd(24, 50, 448 * 3584)
        A("v_lshrrev_b32 v2, 3, v0")
        A("s_mov_b32 s30, 3584")
        A("v_mul_lo_u32 v2, v2, s30")
        A("v_and_b32 v1, 7, v0")
        A("v_lshl_add_u32 v2, v1, 4, v2")
        A("s_lshl_b32 s30, s33, 7")
        GB = [64, 120, 176]
        chunks = [(m, q) for m in range(2) for q in range(4)]
        def issue(n):
            m, q = chunks[n]
            b = GB[n % 3]
            srd = "s[20:23]" if m == 0 else "s[24:27]"
            for t in range(14):
                A(f"s_add_u32 s31, s30, {(q*112 + t*8)*3584}")
                A(f"buffer_load_dwordx4 v[{b+4*t}:{b+4*t+3}], v2, {srd}, s31 offen nt")
        for n in range(3): issue(n)
        A("s_barrier")
        self.get_tag()
        A("s_waitcnt vmcnt(42)")
        self.ln()
        self.masks()
        A("v_lshrrev_b32 v3, 3, v0")
        A("v_lshlrev_b32 v3, 2, v3")
        for n in range(8):
            m, q = chunks[n]
            for t in range(14):
                A(f"ds_read_b32 v{32+t}, v3 offset:{L_XD + q*448 + t*32}")
            inflight = min(8, n + 3) - (n + 1)
            A(f"s_waitcnt vmcnt({14*inflight}) lgkmcnt(0)")
            acc = 56 if m == 0 else 60
            b = GB[n % 3]
            for t in range(14):
                a = 48 + 4 * (t & 1)
                for k in range(4):
                    A(f"v_and_b32 v{a+k}, v{8+k}, v{32+t}")
                self.nop(2)
                src = "0" if (t == 0 and q == 0) else f"v[{acc}:{acc+3}]"
                A(f"v_mfma_f32_16x16x32_bf16 v[{acc}:{acc+3}], v[{a}:{a+3}], v[{b+4*t}:{b+4*t+3}], {src}")
            if n + 3 < 8: issue(n + 3)
        self.srd(20, 52, 1792 * 896)
        A("v_and_b32 v4, 15, v0")
        A("v_lshrrev_b32 v5, 4, v0")
        A("v_mul_u32_u24 v6, 896, v5")
        A("v_lshl_add_u32 v6, v4, 4, v6")
        A("s_lshl_b32 s30, s33, 6")
        A("s_mul_i32 s30, s30, 896")
        DB = [64, 128, 192]
        def issue_d(n):
            b = DB[n % 3]
            for tt in range(4):
                A(f"s_add_u32 s31, s30, {(n*4+tt)*4*896}")
                for cb in range(4):
                    r = b + (tt * 4 + cb) * 4
                    A(f"buffer_load_dwordx4 v[{r}:{r+3}], v6, s[20:23], s31 offen offset:{cb*256} nt")
        for n in range(3): issue_d(n)
        A("v_lshlrev_b32 v7, 4, v0")
        self.nop(4)
        A(f"ds_write_b128 v7, v[56:59] offset:{L_P}")
        A(f"ds_write_b128 v7, v[60:63] offset:{L_P+1024}")
        A("v_and_b32 v2, 7, v0")
        A("v_bfe_u32 v3, v0, 3, 1")
        A("v_lshl_add_u32 v7, v3, 4, v2")
        A("v_lshlrev_b32 v7, 4, v7")
        A("s_waitcnt lgkmcnt(0)")
        A(f"ds_read_b128 v[32:35], v7 offset:{L_P}")
        A(f"ds_read_b128 v[36:39], v7 offset:{L_P+640}")
        A(f"ds_read_b128 v[40:43], v7 offset:{L_P+1024}")
        A(f"ds_read_b128 v[44:47], v7 offset:{L_P+1024+640}")
        A("s_waitcnt lgkmcnt(0)")
        for k in range(4):
            A(f"v_add_f32 v{32+k}, v{32+k}, v{36+k}")
            A(f"v_add_f32 v{40+k}, v{40+k}, v{44+k}")
            self.bf16r(f"v{32+k}")
            self.bf16r(f"v{40+k}")
            A(f"v_max_f32 v{32+k}, 0, v{32+k}")
            A(f"v_mul_f32 v{32+k}, v{32+k}, v{40+k}")
            A(f"v_cvt_pk_bf16_f32 v{32+k}, v{32+k}, v{32+k}")
        A("v_lshlrev_b32 v2, 5, v2")
        A("v_lshl_add_u32 v2, v3, 4, v2")
        self.setexec(0xffff)
        A(f"ds_write_b128 v2, v[32:35] offset:{L_HD}")
        self.setexec(-1)
        A("s_waitcnt lgkmcnt(0)")
        A("v_lshlrev_b32 v3, 2, v5")
        for t in range(16):
            A(f"ds_read_b32 v{12+t}, v3 offset:{L_HD + t*16}")
        A("s_waitcnt lgkmcnt(0)")
        for n in range(4):
            inflight = min(4, n + 3) - (n + 1)
            A(f"s_waitcnt vmcnt({16*inflight})")
            b = DB[n % 3]
            for tt in range(4):
                t = n * 4 + tt
                a = 48 + 4 * (t & 1)
                for k in range(4):
                    A(f"v_and_b32 v{a+k}, v{8+k}, v{12+t}")
                self.nop(2)
                for cb in range(4):
                    r = b + (tt * 4 + cb) * 4
                    src = "0" if t == 0 else f"v[{32+4*cb}:{35+4*cb}]"
                    A(f"v_mfma_f32_16x16x32_bf16 v[{32+4*cb}:{35+4*cb}], v[{a}:{a+3}], v[{r}:{r+3}], {src}")
            if n + 3 < 4: issue_d(n + 3)
        for cb in range(4):
            A(f"v_mov_b32 v{65+4*cb}, {TAG}"); A(f"v_mov_b32 v{67+4*cb}, {TAG}")
        A("v_cmp_lt_u32 s[78:79], 31, v0")
        A("v_lshlrev_b32 v6, 6, v4")
        A("v_and_b32 v7, 1, v5")
        A("v_lshl_add_u32 v6, v7, 5, v6")
        A("v_lshrrev_b32 v7, 1, v5")
        A("v_lshl_add_u32 v6, v7, 4, v6")
        A("s_add_u32 s31, s33, 256")
        A(f"s_mul_i32 s31, s31, {YP_STRIDE}")
        A(f"s_add_u32 s31, s31, {YP_OFF}")
        self.nop(2)
        for cb in range(4):
            A(f"v_cndmask_b32 v{64+4*cb}, v{32+4*cb}, v{34+4*cb}, s[78:79]")
            A(f"v_cndmask_b32 v{66+4*cb}, v{33+4*cb}, v{35+4*cb}, s[78:79]")
            if cb == 3: self.setexec(0x00ff00ff00ff00ff)
            A(f"buffer_store_dwordx4 v[{64+4*cb}:{67+4*cb}], v6, s[16:19], s31 offen offset:{cb*1024} sc1")
        self.setexec(-1)
        A("s_waitcnt vmcnt(0)")
        A("s_branch L_prefetch0")

    def worker(self):
        A = self.A; C = self.C
        self.label("L_worker")
        A("s_cmp_eq_u32 s28, 2")
        w0 = self.new("w")
        A(f"s_cbranch_scc0 {w0}")
        A(f"s_cmp_eq_u32 s3, {NWK-1}")
        A("s_cbranch_scc1 L_ffn")
        self.label(w0)
        A("s_cmp_eq_u32 s28, 0")
        A("s_cbranch_scc1 L_wroleQ")
        A("s_mov_b32 s32, 1")
        A("s_branch L_prefetch")

        C("role Q: q strip producer (64 rows per wave)")
        self.label("L_wroleQ")
        self.srd(20, 42, 448 * 8192)
        A("v_lshrrev_b32 v62, 3, v0")
        A("v_lshlrev_b32 v62, 13, v62")
        A("v_and_b32 v1, 7, v0")
        A("v_lshl_add_u32 v62, v1, 4, v62")
        A(f"s_lshl_b32 s30, s3, 19")
        A("s_lshl_b32 s31, s29, 7")
        A("s_add_u32 s30, s30, s31")
        for t in range(8):
            A(f"s_add_u32 s31, s30, {t*8*8192}")
            A(f"buffer_load_dwordx4 v[{192+4*t}:{195+4*t}], v62, s[20:23], s31 offen nt")
        self.masks()
        A("s_barrier")
        A("v_lshrrev_b32 v63, 3, v0")
        A("v_lshlrev_b32 v63, 2, v63")
        A(f"s_lshl_b32 s31, s3, 8")
        A(f"s_add_u32 s31, s31, {L_XD}")
        A("v_add_u32 v63, s31, v63")
        A("s_barrier")
        for t in range(8):
            A(f"ds_read_b32 v{32+t}, v63 offset:{t*32}")
        A("s_waitcnt vmcnt(0) lgkmcnt(0)")
        self.gemv_strip(192, 56, nt=8)
        A("v_lshlrev_b32 v62, 4, v0")
        A("s_lshl_b32 s31, s3, 10")
        A(f"s_add_u32 s31, s31, {L_P}")
        A("v_add_u32 v62, s31, v62")
        self.nop(8)
        A("ds_write_b128 v62, v[56:59]")
        A("s_waitcnt lgkmcnt(0)")
        A("s_barrier")
        A("s_barrier")
        self.label("L_prefetch0")
        A("s_mov_b32 s32, 0")

        C("staggered prefetch of the 3 static items")
        self.label("L_prefetch")
        A("v_and_b32 v2, 15, v0")
        A("v_lshrrev_b32 v3, 4, v0")
        A("v_lshrrev_b32 v4, 2, v2")
        A("v_lshlrev_b32 v4, 9, v4")
        A("v_lshl_add_u32 v4, v3, 6, v4")
        A("v_and_b32 v1, 3, v2")
        A("v_lshl_add_u32 v4, v1, 4, v4")
        A("v_add_u32 v5, 4096, v4")
        A("v_lshlrev_b32 v6, 9, v3")
        A("v_lshl_add_u32 v6, v2, 4, v6")
        A("v_add_u32 v7, 4096, v6")
        A(f"s_mul_i32 s61, s6, {self.RX}")
        A(f"s_mul_i32 s30, s7, {NWK}")
        A("s_add_u32 s61, s61, s30")
        A("s_add_u32 s61, s61, s3")
        A("s_lshl_b32 s61, s61, 13")
        A(f"s_add_u32 s70, s61, {4*NWK*8192}")
        A(f"s_add_u32 s71, s61, {8*NWK*8192}")
        seq = [("K", 0, "s61"), ("V", 0, "s61"), ("K", 1, "s70"), ("V", 1, "s70"), ("K", 2, "s71"), ("V", 2, "s71")]
        first = self.PF0
        for n in range(first): self.ld_tile(*seq[n])
        A("s_cmp_eq_u32 s32, 0")
        w1 = self.new("w")
        A(f"s_cbranch_scc1 {w1}")
        A("s_barrier")
        self.label(w1)
        self.masks()
        self.get_tag()
        for n in range(first, 6):
            A(f"s_waitcnt vmcnt({8*(self.PF-1)})")
            self.ld_tile(*seq[n])
        self.Qinit = [("K", 2, 2), ("V", 2, 2)][2 - self.PF:]
        A(f"v_mov_b32 v62, {L_QF}")
        sq = self.new("spinq")
        self.label(sq)
        A("ds_read_b32 v31, v62")
        A("s_waitcnt lgkmcnt(0)")
        A("v_readfirstlane_b32 s66, v31")
        self.nop(2)
        A("s_cmp_lg_u32 s66, 0")
        sqd = self.new("spinqd")
        A(f"s_cbranch_scc1 {sqd}")
        A("s_sleep 1")
        A(f"s_branch {sq}")
        self.label(sqd)
        A("v_lshrrev_b32 v62, 3, v2")
        A("v_lshlrev_b32 v62, 9, v62")
        A("v_lshl_add_u32 v62, v3, 6, v62")
        A("v_and_b32 v1, 3, v2")
        A("v_lshl_add_u32 v62, v1, 4, v62")
        A(f"ds_read_b128 v[12:15], v62 offset:{L_Q}")
        A(f"ds_read_b128 v[16:19], v62 offset:{L_Q+256}")
        for k in range(8):
            A(f"v_mov_b32 v{20+k}, 0")
        A("v_mov_b32 v28, 0xff800000")
        A("v_mov_b32 v29, 0xff800000")
        A("v_mov_b32 v30, 0")
        A(f"v_mov_b32 v60, {L_CNT}")
        A("v_mov_b32 v61, 1")
        A("s_mov_b32 s64, -1")
        A("s_mov_b32 s65, 0")
        A("s_waitcnt lgkmcnt(0)")
        if self.stamps:
            A("v_mov_b32 v63, 0")
            A("v_mov_b32 v1, 0")
            A("s_mov_b32 s94, 0")
            A("s_mov_b32 s95, -1")
            A("s_mov_b32 s69, -1")
            self.wstamp()
        rare = []
        drains = []
        Q = list(self.Qinit)
        def wait(kind, item):
            idxs = [i for i, q in enumerate(Q) if q[0] == kind and q[1] == item]
            if not idxs: return
            idx = idxs[0]
            after = len(Q) - idx - 1
            A(f"s_waitcnt vmcnt({8*after})")
            del Q[:idx + 1]
        def process(item, buf, refill, nxt, pending):
            if refill: self.pop_issue()
            wait("K", item)
            self.qk(buf)
            if refill:
                d = self.new("drain")
                drains.append((d, item, buf, list(Q), list(pending)))
                self.pop_resolve(d)
                self.ld_tile("K", buf, "s69"); Q.append(("K", nxt, buf))
            else:
                self.nop(8)
            self.softmax(rare)
            wait("V", item)
            self.pv(buf)
            if refill:
                self.ld_tile("V", buf, "s69"); Q.append(("V", nxt, buf))
        RS = self.RS
        if self.ND < NWK:
            A(f"s_cmp_ge_u32 s3, {self.ND}")
            A("s_cbranch_scc1 L_static_only")
        if self.direct:
            assert RS == 3
            Q0 = [("K", 0, 0), ("V", 0, 0), ("K", 1, 1), ("V", 1, 1), ("K", 2, 2), ("V", 2, 2)]
        else:
            nxt = 3
            pend = [(1, 1), (2, 2)]
            for n in range(3):
                rf = n < RS
                pending = [(it, b) for (it, b) in pend if it > n]
                pending += [(3 + k, k) for k in range(min(n, RS))]
                process(n, n, rf, nxt, pending)
                if rf: nxt += 1
            Q0 = [(k, it - 3, b) for (k, it, b) in Q]
        self.label("L_loop")
        Q[:] = list(Q0)
        for n in range(RS):
            pending = [(m, m) for m in range(n + 1, RS)] + [(RS + k, k) for k in range(n)]
            process(n, n, True, n + RS, pending)
        Q1 = [(k, it - RS, b) for (k, it, b) in Q]
        assert Q1 == Q0, (Q0, Q1)
        A("s_branch L_loop")
        for (d, item, buf, q, pending) in drains:
            self.label(d)
            Q[:] = list(q)
            self.nop(8)
            self.softmax(rare)
            wait("V", item)
            self.pv(buf)
            for (it, b) in pending:
                wait("K", it)
                self.qk(b)
                self.nop(8)
                self.softmax(rare)
                wait("V", it)
                self.pv(b)
            assert not Q, Q
            A("s_branch L_wfin")
        if self.ND < NWK:
            self.label("L_static_only")
            Q[:] = list(self.Qinit)
            for n in range(3):
                process(n, n, False, None, [])
            A("s_branch L_wfin")
        for (r, b) in rare:
            self.rare_block(r, b)
        self.label("L_wfin")
        if self.stamps:
            A("v_lshlrev_b32 v62, 2, v0")
            A("s_lshl_b32 s31, s2, 3")
            A("s_add_u32 s31, s31, s3")
            A("s_lshl_b32 s31, s31, 8")
            A(f"s_add_u32 s31, s31, {ST_OFF + 0x10000}")
            A("buffer_store_dword v63, v62, s[16:19], s31 offen")
            A("s_add_u32 s31, s31, 0x80000")
            A("buffer_store_dword v1, v62, s[16:19], s31 offen")
        self.allreduce("add", "v30", "v31", steps=("p16", "p32"))
        A("v_lshrrev_b32 v62, 1, v3")
        A("v_lshlrev_b32 v62, 10, v62")
        A("v_lshl_add_u32 v62, v2, 5, v62")
        A("v_and_b32 v1, 1, v3")
        A("v_lshl_add_u32 v62, v1, 4, v62")
        A(f"s_mul_i32 s31, s3, 2304")
        A(f"s_add_u32 s31, s31, {L_M}")
        A("v_add_u32 v62, s31, v62")
        self.nop(4)
        A("ds_write_b128 v62, v[20:23]")
        A("ds_write_b128 v62, v[24:27] offset:512")
        A("v_lshrrev_b32 v63, 3, v0")
        A("v_lshlrev_b32 v63, 3, v63")
        A("v_add_u32 v63, s31, v63")
        A("v_mov_b32 v29, v30")
        self.setexec(0x101)
        A("ds_write_b64 v63, v[28:29] offset:2048")
        self.setexec(-1)
        A("s_waitcnt lgkmcnt(0)")
        A(f"s_mul_i32 s31, s2, {REC_STRIDE}")
        A(f"s_add_u32 s31, s31, {REC_OFF}")
        A(f"v_mov_b32 v2, {L_M + 2048}")
        A("v_lshlrev_b32 v3, 4, v0")
        A("v_lshlrev_b32 v4, 3, v0")
        A(f"v_mov_b32 v33, {TAG}"); A(f"v_mov_b32 v35, {TAG}")
        A("s_lshl_b32 s30, s3, 9")
        A("v_add_u32 v4, s30, v4")
        A("s_lshl_b32 s30, s3, 10")
        A("s_add_u32 s30, s30, s31")
        A("s_lshr_b32 s66, s3, 1")
        A("s_lshl_b32 s66, s66, 3")
        A("v_add_u32 v5, s66, v2")
        A("v_and_b32 v6, 1, v0")
        A("v_lshlrev_b32 v6, 3, v6")
        A("v_add_u32 v6, v6, v2")
        A("s_barrier")
        A("s_cmp_gt_u32 s3, 4")
        A("s_cbranch_scc1 L_end")
        A("s_cmp_eq_u32 s3, 4")
        A("s_cbranch_scc1 L_whead")
        C("record quarter k = wave: elements h*256 + half*128 + 2*lane + {0,1}")
        for w in range(NWK):
            A(f"ds_read_b64 v[{64+2*w}:{65+2*w}], v5 offset:{w*2304}")
        for w in range(NWK):
            A(f"ds_read_b64 v[{80+2*w}:{81+2*w}], v4 offset:{L_M + w*2304}")
        A(f"s_waitcnt lgkmcnt({NWK})")
        A("v_max_f32 v36, v64, v66")
        for w in range(2, NWK):
            A(f"v_max_f32 v36, v36, v{64+2*w}")
        for w in range(NWK):
            A(f"v_sub_f32 v{64+2*w}, v{64+2*w}, v36")
        for w in range(NWK):
            A(f"v_mul_f32 v{64+2*w}, s60, v{64+2*w}")
        for w in range(NWK):
            A(f"v_exp_f32 v{64+2*w}, v{64+2*w}")
        A("s_waitcnt lgkmcnt(0)")
        A("v_mul_f32 v32, v64, v80"); A("v_mul_f32 v34, v64, v81")
        for w in range(1, NWK):
            A(f"v_fmac_f32 v32, v{64+2*w}, v{80+2*w}")
            A(f"v_fmac_f32 v34, v{64+2*w}, v{81+2*w}")
        A("buffer_store_dwordx4 v[32:35], v3, s[16:19], s30 offen sc1")
        if self.stamps and self.ackst:
            A("s_memrealtime s[90:91]")
            A("s_waitcnt vmcnt(0)")
            A("s_memrealtime s[92:93]")
            A("s_waitcnt lgkmcnt(0)")
            A("v_mov_b32 v36, s90"); A("v_mov_b32 v37, s92")
            A("s_lshl_b32 s66, s2, 5")
            A("s_lshl_b32 s67, s3, 3")
            A("s_add_u32 s66, s66, s67")
            A(f"s_add_u32 s66, s66, {ST_OFF + 0x110000}")
            A("v_mov_b32 v38, 0")
            self.setexec(1)
            A("buffer_store_dwordx2 v[36:37], v38, s[16:19], s66 offen")
            self.setexec(-1)
        A("s_cmp_ge_u32 s2, 112")
        A("s_cbranch_scc1 L_end")
        A("s_branch L_hop2")
        self.label("L_whead")
        C("header line {M, tag, L, tag} x 2 heads (lane parity = head), written as one full line")
        for w in range(NWK):
            A(f"ds_read_b64 v[{64+2*w}:{65+2*w}], v6 offset:{w*2304}")
        A("s_waitcnt lgkmcnt(0)")
        A("v_max_f32 v32, v64, v66")
        for w in range(2, NWK):
            A(f"v_max_f32 v32, v32, v{64+2*w}")
        for w in range(NWK):
            A(f"v_sub_f32 v{64+2*w}, v{64+2*w}, v32")
        for w in range(NWK):
            A(f"v_mul_f32 v{64+2*w}, s60, v{64+2*w}")
        for w in range(NWK):
            A(f"v_exp_f32 v{64+2*w}, v{64+2*w}")
        A("s_nop 0")
        A("v_mul_f32 v34, v64, v65")
        for w in range(1, NWK):
            A(f"v_fmac_f32 v34, v{64+2*w}, v{65+2*w}")
        A("s_add_u32 s30, s31, 4096")
        self.setexec(0xff)
        A("buffer_store_dwordx4 v[32:35], v3, s[16:19], s30 offen sc1")
        A("s_branch L_end")
        self.label("L_hop2")
        A("s_barrier")
        C("hop 2: thread t = w*64+lane polls ypart[t][4b..4b+3] granules")
        A("s_lshl_b32 s31, s3, 6")
        A("v_add_u32 v1, s31, v0")
        A(f"v_mul_u32_u24 v62, {YP_STRIDE}, v1")
        A("s_lshl_b32 s31, s2, 5")
        A(f"s_add_u32 s31, s31, {YP_OFF}")
        if self.pipe:
            p = self.new("poll2"); g0 = self.new("got0"); g1 = self.new("got1"); cont = self.new("cont2")
            PS = [64, 80]
            def issue(P):
                A(f"buffer_load_dwordx4 v[{P}:{P+3}], v62, s[16:19], s31 offen sc1")
                A(f"buffer_load_dwordx4 v[{P+4}:{P+7}], v62, s[16:19], s31 offen offset:16 sc1")
            issue(PS[0])
            self.label(p)
            for (cur, oth, gl) in ((0, 1, g0), (1, 0, g1)):
                issue(PS[oth])
                A("s_waitcnt vmcnt(2)")
                self.check_tags([f"v{PS[cur]+1+2*k}" for k in range(4)], "v40")
                A(f"s_cbranch_vccz {gl}")
            A(f"s_branch {p}")
            for (cur, gl) in ((1, g1), (0, g0)):
                self.label(gl)
                P = PS[cur]
                for k in range(4):
                    A(f"v_mov_b32 v{32+2*k}, v{P+2*k}")
                if cur == 1: A(f"s_branch {cont}")
            self.label(cont)
        else:
            p = self.new("poll2"); pd = self.new("poll2d")
            self.label(p)
            A("buffer_load_dwordx4 v[32:35], v62, s[16:19], s31 offen sc1")
            A("buffer_load_dwordx4 v[36:39], v62, s[16:19], s31 offen offset:16 sc1")
            A("s_waitcnt vmcnt(0)")
            self.check_tags(["v33", "v35", "v37", "v39"], "v40")
            A(f"s_cbranch_vccz {pd}")
            if self.masked: A("s_mov_b64 exec, vcc")
            if self.sleep2: A(f"s_sleep {self.sleep2}")
            A(f"s_branch {p}")
            self.label(pd)
            self.setexec(-1)
        self.allreduce_multi("add", ["v32", "v34", "v36", "v38"], ["v40", "v41", "v42", "v43"], ("q1", "q2", "hm", "rm", "p16", "p32"))
        A("v_mov_b32 v33, v34"); A("v_mov_b32 v34, v36"); A("v_mov_b32 v35, v38")
        A("s_lshl_b32 s31, s3, 4")
        A(f"s_add_u32 s31, s31, {L_R}")
        A("v_mov_b32 v62, s31")
        self.setexec(1)
        A("ds_write_b128 v62, v[32:35]")
        self.setexec(-1)
        A("s_waitcnt lgkmcnt(0)")
        A("s_barrier")
        A("s_branch L_end")

    def check_tags(self, regs, tmp):
        A = self.A
        A(f"v_xor_b32 {tmp}, {TAG}, {regs[0]}")
        for r in regs[1:]:
            A(f"v_xor_b32 v63, {TAG}, {r}")
            A(f"v_or_b32 {tmp}, {tmp}, v63")
        A(f"v_cmp_ne_u32 vcc, 0, {tmp}")
        self.nop(1)

    def ffn_part(self):
        A = self.A
        self.C("FFN part of hop 2 (wg < 112): sum 28 partials for columns 4b..4b+3, plus x")
        A(f"v_mul_u32_u24 v100, {YP_STRIDE}, v0")
        A("s_lshl_b32 s31, s2, 5")
        A(f"s_add_u32 s31, s31, {YP_OFF + 256*YP_STRIDE}")
        p = self.new("pollf"); pd = self.new("pollfd")
        self.setexec(0xfffffff)
        self.label(p)
        A("buffer_load_dwordx4 v[112:115], v100, s[16:19], s31 offen sc1")
        A("buffer_load_dwordx4 v[116:119], v100, s[16:19], s31 offen offset:16 sc1")
        A("s_waitcnt vmcnt(0)")
        self.check_tags(["v113", "v115", "v117", "v119"], "v101")
        A(f"s_cbranch_vccz {pd}")
        A("s_sleep 1")
        if not self.allN: A(f"s_branch {p}")
        self.label(pd)
        self.setexec(-1)
        A("v_cmp_gt_u32 vcc, 28, v0")
        self.nop(2)
        for k in range(4):
            A(f"v_cndmask_b32 v{112+2*k}, 0, v{112+2*k}, vcc")
        self.srd(20, 36, 896)
        A("s_lshl_b32 s31, s2, 3")
        A("v_mov_b32 v100, 0")
        A("buffer_load_dwordx2 v[120:121], v100, s[20:23], s31 offen nt")
        self.allreduce_multi("add", ["v112", "v114", "v116", "v118"], ["v101", "v102", "v103", "v104"], ("q1", "q2", "hm", "rm", "p16", "p32"))
        for k in range(4):
            self.bf16r(f"v{112+2*k}")
        A("s_waitcnt vmcnt(0)")
        A("s_mov_b32 s72, 1")

    def control(self):
        A = self.A; C = self.C
        self.label("L_control")
        self.stamp(0)
        self.srd(20, 36, 896)
        A("v_lshlrev_b32 v1, 4, v0")
        A("s_cmp_lg_u32 s28, 0")
        x0 = self.new("x")
        A(f"s_cbranch_scc1 {x0}")
        A("buffer_load_dwordx4 v[8:11], v1, s[20:23], 0 offen nt")
        self.label(x0)
        A("v_mov_b32 v4, -1"); A("v_mov_b32 v5, -1"); A("v_mov_b32 v6, -1"); A("v_mov_b32 v7, -1")
        for k in range(TBL_KB):
            A(f"ds_write_b128 v1, v[4:7] offset:{L_TBL + k*1024}")
        A("v_mov_b32 v2, 0")
        A(f"v_mov_b32 v3, {1 if self.noq else 0}")
        A(f"ds_write_b64 v2, v[2:3] offset:{L_CNT}")
        A("s_waitcnt lgkmcnt(0)")
        A("s_barrier")
        self.get_tag()
        A("s_cmp_lg_u32 s28, 0")
        A("s_cbranch_scc1 L_cpollq")
        C("role Q: producer 8g zeroes the ticket counters of head g")
        A("s_and_b32 s30, s29, 7")
        A("s_cmp_lg_u32 s30, 0")
        A("s_cbranch_scc1 L_cln")
        self.setexec(0x1ff)
        A("v_lshlrev_b32 v3, 8, v0")
        A("s_lshl_b32 s30, s29, 9")
        A(f"s_add_u32 s31, s30, {CTR_OFF}")
        A("buffer_store_dword v2, v3, s[16:19], s31 offen sc1")
        self.setexec(-1)
        self.label("L_cln")
        A("s_waitcnt vmcnt(0)")
        self.ln()
        A("s_barrier")
        self.stamp(1)
        A("v_and_b32 v2, 7, v0")
        A("v_bfe_u32 v3, v0, 3, 1")
        A("v_lshl_add_u32 v2, v3, 4, v2")
        A("v_lshlrev_b32 v2, 4, v2")
        A(f"v_mov_b32 v17, {TAG}")
        A(f"v_mov_b32 v19, {TAG}")
        A("v_and_b32 v4, 7, v0")
        A("v_lshlrev_b32 v4, 5, v4")
        A("v_lshl_add_u32 v4, v3, 4, v4")
        A("s_lshl_b32 s31, s29, 8")
        A(f"s_add_u32 s31, s31, {Q_OFF}")
        A("s_barrier")
        for w in range(NWK):
            A(f"ds_read_b128 v[{32+8*w}:{35+8*w}], v2 offset:{L_P + w*1024}")
            A(f"ds_read_b128 v[{36+8*w}:{39+8*w}], v2 offset:{L_P + w*1024 + 640}")
        A("s_waitcnt lgkmcnt(0)")
        for k in range(4):
            A(f"v_add_f32 v{12+k}, v{32+k}, v{36+k}")
        for w in range(1, NWK):
            for k in range(4):
                A(f"v_add_f32 v{32+8*w+k}, v{32+8*w+k}, v{36+8*w+k}")
            for k in range(4):
                A(f"v_add_f32 v{12+k}, v{12+k}, v{32+8*w+k}")
        A("v_cvt_pk_bf16_f32 v16, v12, v13")
        A("v_cvt_pk_bf16_f32 v18, v14, v15")
        self.setexec(0xffff)
        A("buffer_store_dwordx4 v[16:19], v4, s[16:19], s31 offen sc1")
        self.setexec(-1)
        A("s_barrier")
        self.stamp(2)
        C("poll q granules of this head group")
        self.label("L_cpollq")
        A("v_lshlrev_b32 v2, 4, v0")
        A("s_lshl_b32 s31, s4, 11")
        A(f"s_add_u32 s31, s31, {Q_OFF}")
        p = self.new("pollq"); pd = self.new("pollqd")
        self.label(p)
        A("buffer_load_dwordx4 v[4:7], v2, s[16:19], s31 offen sc1")
        A("buffer_load_dwordx4 v[8:11], v2, s[16:19], s31 offen offset:1024 sc1")
        A("s_waitcnt vmcnt(0)")
        self.check_tags(["v5", "v7", "v9", "v11"], "v12")
        A(f"s_cbranch_vccz {pd}")
        if not self.allN: A(f"s_branch {p}")
        self.label(pd)
        self.stamp(3)
        A("v_mov_b32 v5, v6")
        A("v_mov_b32 v9, v10")
        A("v_lshlrev_b32 v3, 3, v0")
        A(f"ds_write_b64 v3, v[4:5] offset:{L_Q}")
        A(f"ds_write_b64 v3, v[8:9] offset:{L_Q+512}")
        A("v_mov_b32 v4, 1")
        A(f"v_mov_b32 v5, {L_QF}")
        A("s_waitcnt lgkmcnt(0)")
        A("ds_write_b32 v5, v4")
        self.stamp(4)
        if self.warm == 2:
            C("touch this workgroup's hand-off lines early with loads")
            A("v_lshlrev_b32 v2, 4, v0")
            A(f"s_mul_i32 s31, s2, {REC_STRIDE}")
            A(f"s_add_u32 s31, s31, {REC_OFF}")
            for k in range(4):
                A(f"buffer_load_dwordx4 v[{192+4*k}:{195+4*k}], v2, s[16:19], s31 offen offset:{k*1024} sc1")
            A("s_add_u32 s31, s31, 4096")
            self.setexec(0xff)
            A("buffer_load_dwordx4 v[208:211], v2, s[16:19], s31 offen sc1")
            self.setexec(-1)
            A(f"s_mul_i32 s31, s2, {YP_STRIDE}")
            A(f"s_add_u32 s31, s31, {YP_OFF}")
            for k in range(3):
                A(f"buffer_load_dwordx4 v[{212+4*k}:{215+4*k}], v2, s[16:19], s31 offen offset:{k*1024} sc1")
            self.setexec(0xffffffff)
            A(f"buffer_load_dwordx4 v[224:227], v2, s[16:19], s31 offen offset:3072 sc1")
            self.setexec(-1)
        if self.warm == 1:
            C("touch this workgroup's hand-off lines early (stale tag) so the final stores / polls find them in the memory-side cache")
            A("v_mov_b32 v4, 0"); A("v_mov_b32 v5, s35"); A("v_mov_b32 v6, 0"); A("v_mov_b32 v7, s35")
            A("v_lshlrev_b32 v2, 4, v0")
            A(f"s_mul_i32 s31, s2, {REC_STRIDE}")
            A(f"s_add_u32 s31, s31, {REC_OFF}")
            for k in range(4):
                A(f"buffer_store_dwordx4 v[4:7], v2, s[16:19], s31 offen offset:{k*1024} sc1")
            A("s_add_u32 s31, s31, 4096")
            self.setexec(3)
            A("buffer_store_dwordx4 v[4:7], v2, s[16:19], s31 offen sc1")
            self.setexec(-1)
            A(f"s_mul_i32 s31, s2, {YP_STRIDE}")
            A(f"s_add_u32 s31, s31, {YP_OFF}")
            for k in range(3):
                A(f"buffer_store_dwordx4 v[4:7], v2, s[16:19], s31 offen offset:{k*1024} sc1")
            self.setexec(0xffffffff)
            A(f"buffer_store_dwordx4 v[4:7], v2, s[16:19], s31 offen offset:3072 sc1")
            self.setexec(-1)
        if not self.latewo:
            self.srd(20, 44, 4096 * 896)
            A("v_and_b32 v2, 15, v0")
            A("v_lshrrev_b32 v3, 4, v0")
            A("v_mul_u32_u24 v4, 896, v3")
            A("v_lshl_add_u32 v4, v2, 4, v4")
            A("s_lshl_b32 s30, s2, 4")
            A("s_mul_i32 s30, s30, 896")
            for t in range(4):
                A(f"s_add_u32 s31, s30, {t*4*896}")
                for cb in range(4):
                    b = 128 + (t * 4 + cb) * 4
                    A(f"buffer_load_dwordx4 v[{b}:{b+3}], v4, s[20:23], s31 offen offset:{cb*256} nt")
        self.masks()
        C("ticket loop: home range -> common pool of the head -> steal from other ranges")
        RX = self.RX
        DX = RX - SPR
        DC = 4096 - 8 * RX
        A("s_mov_b32 s66, 0")
        A("s_mov_b32 s67, s6")
        A(f"s_mov_b32 s77, {DX}")
        A(f"s_mul_i32 s80, s6, {RX}")
        A(f"s_add_u32 s80, s80, {SPR}")
        A("s_mov_b32 s79, 0")
        A("s_mov_b32 s75, 0")
        A(f"v_mov_b32 v13, {L_CNT}")
        A("s_lshl_b32 s68, s4, 12")
        A(f"s_add_u32 s68, s68, {CTR_OFF}")
        A("s_mov_b32 s72, 0")
        self.label("L_floop")
        A("s_cmp_lg_u32 s66, 64")
        A("s_cbranch_scc1 L_floop1")
        A("s_cmp_ge_u32 s2, 112")
        A("s_cbranch_scc1 L_floop1")
        A("s_cmp_lg_u32 s72, 0")
        A("s_cbranch_scc1 L_floop1")
        self.ffn_part()
        self.label("L_floop1")
        A("ds_read_b32 v14, v13")
        A("s_waitcnt lgkmcnt(0)")
        A("v_readfirstlane_b32 s70, v14")
        self.nop(2)
        A("s_sub_i32 s71, s66, s70")
        A(f"s_cmp_le_i32 s71, {self.LVL}")
        A("s_cbranch_scc1 L_fgo0")
        A("s_sleep 2")
        A("s_branch L_floop1")
        self.label("L_fgo0")
        A("s_cmp_lg_u32 s75, 0")
        A("s_cbranch_scc1 L_fnext")
        self.label("L_fgo")
        A("s_lshl_b32 s71, s67, 8")
        A("v_mov_b32 v15, s71")
        A("v_mov_b32 v12, 4")
        self.setexec(1)
        A("buffer_atomic_add v12, v15, s[16:19], s68 offen sc0 sc1")
        A("s_waitcnt vmcnt(0)")
        A("v_readfirstlane_b32 s70, v12")
        self.setexec(-1)
        self.nop(2)
        A("s_cmp_lt_u32 s70, s77")
        A("s_cbranch_scc1 L_fgot")
        self.label("L_fnext")
        A("s_mov_b32 s75, 0")
        A("s_cmp_lg_u32 s79, 0")
        A("s_cbranch_scc1 L_fsteal")
        if DC > 0:
            A("s_mov_b32 s79, 1")
            A("s_mov_b32 s67, 8")
            A(f"s_mov_b32 s77, {DC}")
            A(f"s_mov_b32 s80, {8*RX}")
            A("s_branch L_fgo")
        self.label("L_fsteal")
        A("s_mov_b32 s79, 2")
        A("v_lshlrev_b32 v15, 8, v0")
        self.setexec(0xff)
        A("buffer_load_dword v14, v15, s[16:19], s68 offen sc1")
        A("s_waitcnt vmcnt(0)")
        A(f"v_cmp_gt_u32 vcc, {DX}, v14")
        self.setexec(-1)
        self.nop(2)
        A("s_and_b32 s71, vcc_lo, 0xff")
        A("s_cmp_eq_u32 s71, 0")
        A("s_cbranch_scc1 L_fend")
        A("s_lshl_b32 s73, s71, 8")
        A("s_or_b32 s73, s73, s71")
        A("s_add_u32 s74, s6, 1")
        A("s_lshr_b32 s73, s73, s74")
        A("s_ff1_i32_b32 s73, s73")
        A("s_add_u32 s67, s74, s73")
        A("s_and_b32 s67, s67, 7")
        A(f"s_mov_b32 s77, {DX}")
        A(f"s_mul_i32 s80, s67, {RX}")
        A(f"s_add_u32 s80, s80, {SPR}")
        A("s_branch L_fgo")
        self.label("L_fgot")
        A("s_add_u32 s73, s80, s70")
        A("v_add_u32 v14, s73, v0")
        A("v_add_u32 v15, s66, v0")
        A("v_lshlrev_b32 v15, 2, v15")
        self.setexec(0xf)
        A(f"ds_write_b32 v15, v14 offset:{L_TBL}")
        self.setexec(-1)
        A("s_add_u32 s66, s66, 4")
        A("s_add_u32 s70, s70, 4")
        A("s_cmp_ge_u32 s70, s77")
        A("s_cselect_b32 s75, 1, 0")
        A("s_branch L_floop")
        self.label("L_fend")
        A("v_mov_b32 v14, 4096")
        A("v_add_u32 v15, s66, v0")
        A("v_lshlrev_b32 v15, 2, v15")
        self.setexec(0xff)
        A(f"ds_write_b32 v15, v14 offset:{L_TBL}")
        self.setexec(-1)
        self.stamp(5)
        if self.latewo:
            self.srd(20, 44, 4096 * 896)
            A("v_and_b32 v2, 15, v0")
            A("v_lshrrev_b32 v3, 4, v0")
            A("v_mul_u32_u24 v4, 896, v3")
            A("v_lshl_add_u32 v4, v2, 4, v4")
            A("s_lshl_b32 s30, s2, 4")
            A("s_mul_i32 s30, s30, 896")
            for t in range(4):
                A(f"s_add_u32 s31, s30, {t*4*896}")
                for cb in range(4):
                    b = 128 + (t * 4 + cb) * 4
                    A(f"buffer_load_dwordx4 v[{b}:{b+3}], v4, s[20:23], s31 offen offset:{cb*256} nt")
        A("s_cmp_ge_u32 s2, 112")
        A("s_cbranch_scc1 L_cbt1")
        A("s_cmp_lg_u32 s72, 0")
        A("s_cbranch_scc1 L_cbt1")
        self.ffn_part()
        self.label("L_cbt1")
        C("hop 1 addresses: lane l: rec 8n + (l>>3), piece l&7 (2 granules)")
        A("v_lshrrev_b32 v96, 3, v0")
        A("v_lshlrev_b32 v96, 13, v96")
        A("v_and_b32 v3, 7, v0")
        A("v_lshl_add_u32 v97, v3, 4, v96")
        A("s_lshl_b32 s30, s4, 18")
        A(f"s_add_u32 s30, s30, {REC_OFF}")
        A("s_lshl_b32 s81, s5, 7")
        A("s_add_u32 s81, s81, s30")
        A("s_lshr_b32 s85, s5, 4")
        A("s_lshl_b32 s85, s85, 4")
        A("s_add_u32 s85, s85, s30")
        A("s_add_u32 s85, s85, 4096")
        for n in range(1, 4):
            A(f"s_add_u32 s{81+n}, s81, {n*0x10000}")
            A(f"s_add_u32 s{85+n}, s85, {n*0x10000}")
        A("s_waitcnt lgkmcnt(0)")
        A("s_barrier")
        self.stamp(6)
        self.stamp(7)
        PS = [192, 224]
        def issue(P):
            for n in range(4):
                A(f"buffer_load_dwordx4 v[{P+4*n}:{P+3+4*n}], v97, s[16:19], s{81+n} offen sc1")
                A(f"buffer_load_dwordx4 v[{P+16+4*n}:{P+19+4*n}], v96, s[16:19], s{85+n} offen sc1")
        if self.pipe:
            p = self.new("poll1"); g0 = self.new("got0"); g1 = self.new("got1"); cont = self.new("cont1")
            if self.stamps: A("s_mov_b32 s93, 0")
            issue(PS[0])
            self.label(p)
            for (cur, oth, gl) in ((0, 1, g0), (1, 0, g1)):
                issue(PS[oth])
                A("s_waitcnt vmcnt(8)")
                if self.stamps:
                    A("s_add_u32 s93, s93, 1")
                    A("s_memrealtime s[90:91]")
                    A("s_waitcnt lgkmcnt(0)")
                    A("s_min_u32 s92, s93, 30")
                    A("s_add_u32 s92, s92, 31")
                    A("s_mov_b32 m0, s92")
                    A("s_nop 0")
                    A("v_writelane_b32 v127, s90, m0")
                self.check_tags([f"v{PS[cur]+1+2*k}" for k in range(16)], "v12")
                A(f"s_cbranch_vccz {gl}")
            A(f"s_branch {p}")
            for (cur, gl) in ((1, g1), (0, g0)):
                self.label(gl)
                P = PS[cur]
                for n in range(4):
                    A(f"v_mov_b32 v{32+4*n}, v{P+4*n}")
                    A(f"v_mov_b32 v{34+4*n}, v{P+2+4*n}")
                    A(f"v_mov_b32 v{64+4*n}, v{P+16+4*n}")
                    A(f"v_mov_b32 v{66+4*n}, v{P+18+4*n}")
                if cur == 1: A(f"s_branch {cont}")
            self.label(cont)
        else:
            p = self.new("poll1"); pd = self.new("poll1d")
            if self.stamps: A("s_mov_b32 s93, 0")
            if self.sleep0: A(f"s_sleep {self.sleep0}")
            self.label(p)
            for n in range(4):
                A(f"buffer_load_dwordx4 v[{32+4*n}:{35+4*n}], v97, s[16:19], s{81+n} offen sc1")
                A(f"buffer_load_dwordx4 v[{64+4*n}:{67+4*n}], v96, s[16:19], s{85+n} offen sc1")
            A("s_waitcnt vmcnt(0)")
            if self.stamps:
                A("s_add_u32 s93, s93, 1")
                A("s_memrealtime s[90:91]")
                A("s_waitcnt lgkmcnt(0)")
                A("s_min_u32 s92, s93, 30")
                A("s_add_u32 s92, s92, 31")
                A("s_mov_b32 m0, s92")
                A("s_nop 0")
                A("v_writelane_b32 v127, s90, m0")
            self.check_tags([f"v{33+2*k}" for k in range(8)] + [f"v{65+2*k}" for k in range(8)], "v12")
            A(f"s_cbranch_vccz {pd}")
            if self.masked: A("s_mov_b64 exec, vcc")
            if self.sleep: A(f"s_sleep {self.sleep}")
            A(f"s_branch {p}")
            self.label(pd)
            self.setexec(-1)
        self.stamp(8)
        if self.stamps: A("v_writelane_b32 v127, s93, 30")
        A("v_max3_f32 v48, v64, v68, v72")
        A("v_max_f32 v48, v48, v76")
        self.allreduce("max", "v48", "v49", steps=("ror8", "p16", "p32"))
        for n in range(4):
            A(f"v_sub_f32 v{64+4*n}, v{64+4*n}, v48")
            A(f"v_mul_f32 v{64+4*n}, s60, v{64+4*n}")
            A(f"v_exp_f32 v{64+4*n}, v{64+4*n}")
        A("s_nop 0")
        A("v_mul_f32 v50, v64, v66"); A("v_mul_f32 v51, v64, v32"); A("v_mul_f32 v52, v64, v34")
        for n in range(1, 4):
            A(f"v_fmac_f32 v50, v{64+4*n}, v{66+4*n}")
            A(f"v_fmac_f32 v51, v{64+4*n}, v{32+4*n}")
            A(f"v_fmac_f32 v52, v{64+4*n}, v{34+4*n}")
        self.allreduce_multi("add", ["v50", "v51", "v52"], ["v53", "v54", "v55"], ("ror8", "p16", "p32"))
        A("v_rcp_f32 v53, v50")
        A("s_nop 0")
        for r in ("v51", "v52"):
            A(f"v_mul_f32 v54, {r}, v53")
            A(f"v_fma_f32 v55, -v54, v50, {r}")
            A(f"v_fma_f32 {r}, v55, v53, v54")
        A("v_lshrrev_b32 v3, 4, v0")
        A("v_and_b32 v5, 1, v3")
        A("v_cmp_eq_u32 vcc, 1, v5"); self.nop(2)
        A("v_cndmask_b32 v51, v51, v52, vcc")
        A("v_cvt_pk_bf16_f32 v51, v51, v51")
        self.nop(2)
        for t in range(4):
            A(f"v_mov_b32_dpp v{40+t}, v51 row_newbcast:{2*t} row_mask:0x3 bank_mask:0xf")
            A(f"v_mov_b32_dpp v{40+t}, v51 row_newbcast:{2*t+1} row_mask:0xc bank_mask:0xf")
        for cb in range(4):
            A(f"v_mov_b32 v{81+4*cb}, {TAG}"); A(f"v_mov_b32 v{83+4*cb}, {TAG}")
        A("v_cmp_lt_u32 s[78:79], 31, v0")
        for t in range(4):
            a = 44 + 4 * (t & 1)
            for k in range(4):
                A(f"v_and_b32 v{a+k}, v{8+k}, v{40+t}")
            self.nop(2)
            for cb in range(4):
                b = 128 + (t * 4 + cb) * 4
                src = "0" if t == 0 else f"v[{64+4*cb}:{67+4*cb}]"
                A(f"v_mfma_f32_16x16x32_bf16 v[{64+4*cb}:{67+4*cb}], v[{a}:{a+3}], v[{b}:{b+3}], {src}")
        A("v_and_b32 v2, 15, v0")
        A("v_lshlrev_b32 v4, 6, v2")
        A("v_and_b32 v5, 1, v3")
        A("v_lshl_add_u32 v4, v5, 5, v4")
        A("v_lshrrev_b32 v5, 1, v3")
        A("v_lshl_add_u32 v4, v5, 4, v4")
        A(f"s_mul_i32 s31, s2, {YP_STRIDE}")
        A(f"s_add_u32 s31, s31, {YP_OFF}")
        self.nop(2)
        for cb in range(4):
            A(f"v_cndmask_b32 v{80+4*cb}, v{64+4*cb}, v{66+4*cb}, s[78:79]")
            A(f"v_cndmask_b32 v{82+4*cb}, v{65+4*cb}, v{67+4*cb}, s[78:79]")
            if cb == 3: self.setexec(0x00ff00ff00ff00ff)
            A(f"buffer_store_dwordx4 v[{80+4*cb}:{83+4*cb}], v4, s[16:19], s31 offen offset:{cb*1024} sc1")
        self.setexec(-1)
        self.stamp(9)
        if self.stamps and self.ackst:
            A("s_waitcnt vmcnt(0)")
            self.stamp(12)
        A("s_cmp_ge_u32 s2, 112")
        A("s_cbranch_scc1 L_cend")
        A("s_barrier")
        self.srd(20, 54, 896)
        A("v_lshlrev_b32 v48, 16, v120"); A("v_and_b32 v49, 0xffff0000, v120")
        A("v_lshlrev_b32 v50, 16, v121"); A("v_and_b32 v51, 0xffff0000, v121")
        A(f"v_mov_b32 v2, {L_R}")
        A("s_barrier")
        for w in range(4):
            A(f"ds_read_b128 v[{32+4*w}:{35+4*w}], v2 offset:{w*16}")
        A("s_waitcnt lgkmcnt(0)")
        for k in range(4):
            A(f"v_add_f32 v{32+k}, v{32+k}, v{36+k}")
            A(f"v_add_f32 v{40+k}, v{40+k}, v{44+k}")
            A(f"v_add_f32 v{32+k}, v{32+k}, v{40+k}")
            self.bf16r(f"v{32+k}")
            A(f"v_add_f32 v{32+k}, v{48+k}, v{32+k}")
            self.bf16r(f"v{32+k}")
            A(f"v_add_f32 v{32+k}, v{32+k}, v{112+2*k}")
        A("v_cvt_pk_bf16_f32 v32, v32, v33")
        A("v_cvt_pk_bf16_f32 v33, v34, v35")
        A("s_lshl_b32 s31, s2, 3")
        A("v_mov_b32 v2, 0")
        self.setexec(1)
        A("buffer_store_dwordx2 v[32:33], v2, s[20:23], s31 offen")
        A("s_cmp_lg_u32 s2, 0")
        e0 = self.new("e")
        A(f"s_cbranch_scc1 {e0}")
        A(f"v_mov_b32 v4, {TAG}")
        A(f"buffer_store_dword v4, v2, s[16:19], 0 offen offset:{EP_OFF}")
        self.label(e0)
        self.setexec(-1)
        self.stamp(10)
        self.label("L_cend")
        if self.dbgst: self.dbg_dump()
        if self.stamps:
            A("v_lshlrev_b32 v2, 2, v0")
            A("s_lshl_b32 s31, s2, 8")
            A(f"s_add_u32 s31, s31, {ST_OFF}")
            A("buffer_store_dword v127, v2, s[16:19], s31 offen")
        A("s_branch L_end")

    def build(self):
        A = self.A
        L = self.L
        L.append(HEADER.rstrip())
        L.append(f"; @launch grid=({NWG},1,1) block=({NW*64},1,1) lds={LDS_SIZE}")
        L.append('.amdgcn_target "amdgcn-amd-amdhsa--gfx950"')
        L.append(".text")
        L.append(f".globl {NAME}_kernel")
        L.append(".p2align 8")
        L.append(f".type {NAME}_kernel,@function")
        L.append(f"{NAME}_kernel:")
        A(f"s_cmp_ge_u32 s2, {NWG}")
        A("s_cbranch_scc1 L_end")
        A("s_load_dwordx16 s[36:51], s[0:1], 0")
        A("s_load_dwordx8 s[52:59], s[0:1], 64")
        A("v_lshrrev_b32 v1, 6, v0")
        A("v_and_b32 v0, 63, v0")
        A("s_lshr_b32 s4, s2, 5")
        A("v_readfirstlane_b32 s3, v1")
        A("s_and_b32 s5, s2, 31")
        A("s_and_b32 s6, s2, 7")
        A("s_lshr_b32 s7, s2, 3")
        A("s_and_b32 s7, s7, 3")
        A("s_lshr_b32 s29, s2, 2")
        A("s_lshr_b32 s33, s5, 2")
        A("s_lshl_b32 s33, s33, 3")
        A("s_add_u32 s33, s33, s4")
        A("s_and_b32 s30, s2, 3")
        A("s_mov_b32 s28, 1")
        A("s_cmp_eq_u32 s30, 0")
        A("s_cselect_b32 s28, 0, s28")
        A("s_cmp_lt_u32 s33, 28")
        A("s_cselect_b32 s31, 2, 1")
        A("s_cmp_eq_u32 s30, 1")
        A("s_cselect_b32 s28, s31, s28")
        if self.allN: A("s_mov_b32 s28, 1")
        A(f"s_mov_b32 s60, {hex(f2u(CEXP))}")
        if self.stamps or self.dbgst:
            A("v_mov_b32 v127, 0")
        A("s_waitcnt lgkmcnt(0)")
        A(f"s_load_dword s35, s[58:59], {EP_OFF}")
        A("s_lshl_b32 s30, s4, 25")
        A("s_add_u32 s8, s38, s30")
        A("s_addc_u32 s9, s39, 0")
        A("s_and_b32 s9, s9, 0xffff")
        A("s_mov_b32 s10, 0x2000000")
        A("s_mov_b32 s11, 0x00020000")
        A("s_add_u32 s12, s40, s30")
        A("s_addc_u32 s13, s41, 0")
        A("s_and_b32 s13, s13, 0xffff")
        A("s_mov_b32 s14, 0x2000000")
        A("s_mov_b32 s15, 0x00020000")
        self.srd(16, 58, WS_SIZE)
        A(f"s_cmp_eq_u32 s3, {NWK}")
        A("s_cbranch_scc1 L_control")
        self.worker()
        self.ffn_wave()
        self.control()
        self.label("L_end")
        A("s_endpgm")
        L.append('.section .rodata,"a"')
        L.append(".p2align 6")
        L.append(f".amdhsa_kernel {NAME}_kernel")
        L.append("  .amdhsa_next_free_vgpr 256")
        L.append("  .amdhsa_next_free_sgpr 100")
        L.append("  .amdhsa_accum_offset 256")
        L.append("  .amdhsa_group_segment_fixed_size 0")
        L.append("  .amdhsa_kernarg_size 96")
        L.append("  .amdhsa_user_sgpr_count 2")
        L.append("  .amdhsa_user_sgpr_kernarg_segment_ptr 1")
        L.append("  .amdhsa_system_sgpr_workgroup_id_x 1")
        L.append(".end_amdhsa_kernel")
        return "\n".join(L) + "\n"

if __name__ == "__main__":
    out = sys.argv[1]
    kw = json.loads(sys.argv[2]) if len(sys.argv) > 2 else {}
    open(out, "w").write(Gen(**kw).build())
```

```python
import sys, json, struct
NAME = "parallel_sum__gqa_block_cached__glu_gated_reglu__decode"
HEADER = open("cdna_kernels/%s.s.ref" % NAME).read().split("; Override launch geometry")[0]

NWG = 256
NWK = 7
NW = NWK + 1
EP_OFF = 0x0
Q_OFF = 0x1000
CTR_OFF = 0x8000
REC_OFF = 0x10000
REC_STRIDE = 8192
YP_OFF = 0x210000
YP_STRIDE = 3584
ST_OFF = 0x380000
WS_SIZE = 0x800000
L_CNT = 0
L_QF = 4
L_TBL = 64
TBL_KB = 14
L_XD = L_TBL + TBL_KB * 1024 + 192
L_Q = L_XD + 1792
L_HD = L_Q + 1024
L_P = L_HD + 256
L_M = L_P + 8192
L_R = L_M + NWK * 2304
L_FX = L_R + 64
LDS_SIZE = L_FX + 64
CEXP = 0.09016844005556021
def f2u(f): return struct.unpack("<I", struct.pack("<f", f))[0]

NSTAT = 3
SPR = 4 * NWK * NSTAT
BT = 4
TAG = "s34"

class Gen:
    def __init__(self, RS=1, stamps=False, lead=1, Q=1, sleep=1, PF=1, ND=4, PF0=2, noq=False, nocomp=False, allN=False, nowo=False, direct=False, warm=False, dbgst=False, B=4, ackst=False, X=0, LVL=3, LVLE=3, pipe=False, sleep0=0, sleep2=1, RX=448, latewo=True, masked=True, OWN0=0, noffnpart=False, NE=4):
        self.L = []
        self.NE = NE; self.noffnpart = noffnpart; self.OWN0 = OWN0; self.masked = masked; self.latewo = latewo; self.RX = RX; self.pipe = pipe; self.sleep0 = sleep0; self.sleep2 = sleep2; self.X = X; self.LVL = LVL; self.LVLE = LVLE; self.ackst = ackst; self.B = B; self.LB = B.bit_length() - 1; self.dbgst = dbgst; self.warm = warm; self.direct = direct; self.allN = allN; self.nowo = nowo; self.noq = noq; self.nocomp = nocomp; self.PF = PF; self.ND = ND; self.PF0 = PF0; self.RS = RS; self.stamps = stamps; self.lead = lead; self.Q = Q; self.sleep = sleep
        self.uid = 0
    def A(self, s): self.L.append("  " + s)
    def C(self, s): self.L.append("  ; " + s)
    def label(self, s): self.L.append(s + ":")
    def nop(self, n):
        while n > 0:
            k = min(n, 16); self.A(f"s_nop {k-1}"); n -= k
    def setexec(self, m):
        if m == -1 or 0 <= m <= 64:
            self.A(f"s_mov_b64 exec, {m}")
        else:
            self.A(f"s_mov_b32 exec_lo, {hex(m & 0xffffffff)}")
            self.A(f"s_mov_b32 exec_hi, {hex(m >> 32)}")
    def new(self, p):
        self.uid += 1
        return f"L_{p}_{self.uid}"
    def stamp(self, k):
        A = self.A
        if not (self.stamps or self.dbgst): return
        A("s_memrealtime s[90:91]")
        A("s_waitcnt lgkmcnt(0)")
        A(f"v_writelane_b32 v127, s90, {2*k}")
        A(f"v_writelane_b32 v127, s91, {2*k+1}")
    def dbg_dump(self):
        A = self.A
        self.srd(84, 56, 256)
        A("s_mov_b64 exec, 1")
        for k, m in {0: (0, 1), 3: (None, 2), 5: (3, 4), 6: (10, 5), 7: (None, 6), 8: (None, 7), 9: (None, 8), 10: (None, 9), 4: (None, 11), 2: (None, 12)}.items():
            A(f"v_readlane_b32 s90, v127, {2*k}")
            A("s_nop 3")
            if m[0] is not None:
                A("s_not_b32 s91, s90")
                A("v_mov_b32 v122, s91")
                A(f"v_mov_b32 v123, {4*m[0]}")
                A("buffer_atomic_umax v122, v123, s[84:87], 0 offen sc1")
                A("s_nop 2")
            A("v_mov_b32 v124, s90")
            A(f"v_mov_b32 v125, {4*m[1]}")
            A("buffer_atomic_umax v124, v125, s[84:87], 0 offen sc1")
            A("s_nop 2")
        A("s_mov_b64 exec, -1")
    def allreduce(self, op, v, tmp, steps=("q1", "q2", "hm", "rm", "p16", "p32")):
        A = self.A
        for st in steps:
            if st in ("q1", "q2", "hm", "rm", "ror4", "ror8"):
                mod = {"q1": "quad_perm:[1,0,3,2]", "q2": "quad_perm:[2,3,0,1]", "hm": "row_half_mirror", "rm": "row_mirror",
                       "ror4": "row_ror:4", "ror8": "row_ror:8"}[st]
                self.nop(2)
                A(f"v_{op}_f32_dpp {v}, {v}, {v} {mod} row_mask:0xf bank_mask:0xf")
            else:
                A(f"v_mov_b32 {tmp}, {v}")
                self.nop(2)
                A(f"v_permlane{'16' if st == 'p16' else '32'}_swap_b32 {tmp}, {v}")
                self.nop(1)
                A(f"v_{op}_f32 {v}, {tmp}, {v}")
    def allreduce_multi(self, op, vs, tmps, steps):
        A = self.A
        n = len(vs)
        assert n >= 3
        self.nop(2)
        for st in steps:
            if st in ("q1", "q2", "hm", "rm", "ror4", "ror8"):
                mod = {"q1": "quad_perm:[1,0,3,2]", "q2": "quad_perm:[2,3,0,1]", "hm": "row_half_mirror", "rm": "row_mirror",
                       "ror4": "row_ror:4", "ror8": "row_ror:8"}[st]
                for v in vs:
                    A(f"v_{op}_f32_dpp {v}, {v}, {v} {mod} row_mask:0xf bank_mask:0xf")
            else:
                for v, t in zip(vs, tmps): A(f"v_mov_b32 {t}, {v}")
                self.nop(2)
                for v, t in zip(vs, tmps): A(f"v_permlane{'16' if st == 'p16' else '32'}_swap_b32 {t}, {v}")
                self.nop(1)
                for v, t in zip(vs, tmps): A(f"v_{op}_f32 {v}, {t}, {v}")
    def srd(self, s, ptr, size):
        A = self.A
        A(f"s_mov_b32 s{s}, s{ptr}")
        A(f"s_and_b32 s{s+1}, s{ptr+1}, 0xffff")
        A(f"s_mov_b32 s{s+2}, {size}")
        A(f"s_mov_b32 s{s+3}, 0x00020000")
    def bf16r(self, v):
        self.A(f"v_cvt_pk_bf16_f32 {v}, {v}, {v}")
        self.A(f"v_and_b32 {v}, 0xffff0000, {v}")

    BUF = {0: 64, 1: 128, 2: 192}
    KOFF = [(c >> 1) * 2048 + (c & 1) * 256 for c in range(8)]
    def ld_tile(self, kind, buf, sreg):
        b = self.BUF[buf] + (0 if kind == "K" else 32)
        vr = ("v4", "v5") if kind == "K" else ("v6", "v7")
        srd = "s[8:11]" if kind == "K" else "s[12:15]"
        for c in range(8):
            o = self.KOFF[c]; v = vr[0]
            if o >= 4096: o -= 4096; v = vr[1]
            self.A(f"buffer_load_dwordx4 v[{b+4*c}:{b+4*c+3}], {v}, {srd}, {sreg} offen offset:{o} nt")
    def qk(self, buf):
        b = self.BUF[buf]
        for u in range(2):
            for r in range(4):
                c = 2 * r + u
                src = "0" if u == 0 else f"v[{32+4*r}:{35+4*r}]"
                self.A(f"v_mfma_f32_16x16x32_bf16 v[{32+4*r}:{35+4*r}], v[{b+4*c}:{b+4*c+3}], v[{12+4*u}:{15+4*u}], {src}")
    def softmax(self, rare_blocks):
        A = self.A
        if self.nocomp: return
        for r in range(4):
            A(f"v_mov_b32_dpp v{48+r}, v{32+4*r} quad_perm:[0,0,0,0] row_mask:0xf bank_mask:0xf")
        for k in range(1, 4):
            for r in range(4):
                A(f"v_add_f32_dpp v{48+r}, v{32+4*r+k}, v{48+r} quad_perm:[{k},{k},{k},{k}] row_mask:0xf bank_mask:0xf")
        A("v_cvt_pk_bf16_f32 v52, v48, v49")
        A("v_cvt_pk_bf16_f32 v53, v50, v51")
        A("v_lshlrev_b32 v48, 16, v52")
        A("v_and_b32 v49, 0xffff0000, v52")
        A("v_lshlrev_b32 v50, 16, v53")
        A("v_and_b32 v51, 0xffff0000, v53")
        A("v_max3_f32 v52, v48, v49, v50")
        A("v_max_f32 v52, v52, v51")
        A("v_cmp_gt_f32 vcc, v52, v28")
        rare = self.new("rare"); back = self.new("back")
        self.nop(1)
        A(f"s_cbranch_vccnz {rare}")
        self.label(back)
        for r in range(4):
            A(f"v_fma_f32 v{52+r}, v{48+r}, s60, -v29")
        for r in range(4):
            A(f"v_exp_f32 v{52+r}, v{52+r}")
        A("s_nop 0")
        for r in range(4):
            A(f"v_cvt_pk_bf16_f32 v{56+r}, v{52+r}, v{52+r}")
        A("v_add_f32 v52, v52, v53")
        A("v_add_f32 v54, v54, v55")
        A("v_add_f32 v30, v30, v52")
        A("v_add_f32 v30, v30, v54")
        rare_blocks.append((rare, back))
    def rare_block(self, rare, back):
        A = self.A
        self.label(rare)
        self.allreduce("max", "v52", "v53", steps=("p16", "p32"))
        A("v_max_f32 v52, v52, v28")
        A("v_sub_f32 v53, v28, v52")
        A("v_mul_f32 v53, s60, v53")
        A("v_exp_f32 v53, v53")
        A("v_mov_b32 v28, v52")
        A("v_mul_f32 v29, s60, v52")
        A("v_mul_f32 v30, v30, v53")
        A("v_readlane_b32 s62, v53, 0")
        A("v_readlane_b32 s63, v53, 8")
        self.nop(2)
        A("v_mov_b32 v54, s63")
        A("v_mov_b32 v55, s62")
        A("v_cndmask_b32 v54, v54, v55, s[64:65]")
        self.nop(3)
        for k in range(8):
            A(f"v_mul_f32 v{20+k}, v{20+k}, v54")
        self.nop(2)
        A(f"s_branch {back}")
    def pv(self, buf):
        A = self.A
        b = self.BUF[buf] + 32
        for r in range(4):
            a = 32 + 4 * (r & 1)
            for k in range(4):
                A(f"v_and_b32 v{a+k}, v{8+k}, v{56+r}")
            self.nop(2)
            for u in range(2):
                c = 2 * r + u
                A(f"v_mfma_f32_16x16x32_bf16 v[{20+4*u}:{23+4*u}], v[{a}:{a+3}], v[{b+4*c}:{b+4*c+3}], v[{20+4*u}:{23+4*u}]")
        self.wstamp()
    def wstamp(self):
        if not self.stamps: return
        A = self.A
        A("s_memrealtime s[90:91]")
        A("s_waitcnt lgkmcnt(0)")
        A("s_mov_b32 m0, s94")
        A("s_nop 0")
        A("v_writelane_b32 v63, s90, m0")
        A("v_writelane_b32 v1, s95, m0")
        A("s_mov_b32 s95, s69")
        A("s_add_u32 s94, s94, 1")
    def pop_issue(self):
        self.setexec(1)
        self.A("ds_add_rtn_u32 v31, v60, v61")
        self.setexec(-1)
    def pop_resolve(self, endlabel):
        A = self.A
        A("s_waitcnt lgkmcnt(0)")
        self.setexec(1)
        A("v_lshlrev_b32 v62, 2, v31")
        spin = self.new("spin")
        self.label(spin)
        A(f"ds_read_b32 v31, v62 offset:{L_TBL}")
        A("s_waitcnt lgkmcnt(0)")
        A("v_readfirstlane_b32 s66, v31")
        self.nop(2)
        A("s_cmp_eq_u32 s66, -1")
        A(f"s_cbranch_scc1 {spin}")
        self.setexec(-1)
        A("s_cmp_ge_u32 s66, 4096")
        A(f"s_cbranch_scc1 {endlabel}")
        A("s_lshl_b32 s69, s66, 13")
    def gemv_strip(self, breg, acc, nt=14):
        A = self.A
        for t in range(nt):
            a = 48 + 4 * (t & 1)
            for k in range(4):
                A(f"v_and_b32 v{a+k}, v{8+k}, v{32+t}")
            self.nop(2)
            src = "0" if t == 0 else f"v[{acc}:{acc+3}]"
            A(f"v_mfma_f32_16x16x32_bf16 v[{acc}:{acc+3}], v[{a}:{a+3}], v[{breg+4*t}:{breg+4*t+3}], {src}")
    def masks(self):
        A = self.A
        A("v_and_b32 v1, 1, v0")
        A("v_lshlrev_b32 v1, 4, v1")
        A("v_mov_b32 v31, 0xffff")
        A("v_lshlrev_b32 v31, v1, v31")
        A("v_bfe_u32 v1, v0, 1, 2")
        for k in range(4):
            A(f"v_cmp_eq_u32 vcc, {k}, v1")
            self.nop(2)
            A(f"v_cndmask_b32 v{8+k}, 0, v31, vcc")
    def get_tag(self):
        self.A("s_waitcnt lgkmcnt(0)")
        self.A(f"s_add_u32 {TAG}, s35, 1")

    def ln(self):
        A = self.A
        for k in range(4):
            A(f"v_lshlrev_b32 v{12+2*k}, 16, v{8+k}")
            A(f"v_and_b32 v{13+2*k}, 0xffff0000, v{8+k}")
        A("v_add_f32 v20, v12, v13")
        for k in range(2, 8):
            A(f"v_add_f32 v20, v20, v{12+k}")
        self.allreduce("add", "v20", "v21")
        A(f"v_mul_f32 v20, {hex(f2u(1.0/448.0))}, v20")
        A("v_cmp_gt_u32 vcc, 56, v0")
        A("v_mov_b32 v22, 0")
        for k in range(8):
            A(f"v_sub_f32 v23, v{12+k}, v20")
            A("v_fmac_f32 v22, v23, v23")
        A("v_cndmask_b32 v22, 0, v22, vcc")
        self.allreduce("add", "v22", "v21")
        A(f"v_mul_f32 v22, {hex(f2u(1.0/448.0))}, v22")
        self.bf16r("v22")
        self.bf16r("v20")
        A(f"v_add_f32 v22, {hex(f2u(1e-5))}, v22")
        self.bf16r("v22")
        A("v_sqrt_f32 v22, v22")
        A("s_nop 0")
        self.bf16r("v22")
        A("v_rcp_f32 v23, v22")
        A("s_nop 0")
        for k in range(8):
            A(f"v_sub_f32 v{12+k}, v{12+k}, v20")
            self.bf16r(f"v{12+k}")
            A(f"v_mul_f32 v24, v{12+k}, v23")
            A(f"v_fma_f32 v25, -v24, v22, v{12+k}")
            A(f"v_fma_f32 v24, v25, v23, v24")
            A(f"v_cvt_pk_bf16_f32 v{12+k}, v24, v24")
        A("v_lshlrev_b32 v26, 5, v0")
        self.setexec(0x00ffffffffffffff)
        A(f"ds_write_b128 v26, v[12:15] offset:{L_XD}")
        A(f"ds_write_b128 v26, v[16:19] offset:{L_XD+16}")
        self.setexec(-1)
        A("s_waitcnt lgkmcnt(0)")

    def fstamp(self, k):
        if not self.stamps: return
        A = self.A
        A("s_memrealtime s[90:91]")
        A("s_waitcnt lgkmcnt(0)")
        A(f"v_writelane_b32 v29, s90, {k}")
    def ffn_wave(self):
        A = self.A; C = self.C
        C("FFN strip by one wave: gate/up (64 columns), h, down projection")
        self.label("L_ffn")
        self.srd(20, 36, 896)
        A("v_lshlrev_b32 v1, 4, v0")
        A("buffer_load_dwordx4 v[8:11], v1, s[20:23], 0 offen nt")
        self.srd(20, 48, 448 * 3584)
        self.srd(24, 50, 448 * 3584)
        A("v_lshrrev_b32 v2, 3, v0")
        A("s_mov_b32 s30, 3584")
        A("v_mul_lo_u32 v2, v2, s30")
        A("v_and_b32 v1, 7, v0")
        A("v_lshl_add_u32 v2, v1, 4, v2")
        A("s_lshl_b32 s30, s33, 7")
        GB = [64, 120, 176]
        chunks = [(m, q) for m in range(2) for q in range(4)]
        def issue(n):
            m, q = chunks[n]
            b = GB[n % 3]
            srd = "s[20:23]" if m == 0 else "s[24:27]"
            for t in range(14):
                A(f"s_add_u32 s31, s30, {(q*112 + t*8)*3584}")
                A(f"buffer_load_dwordx4 v[{b+4*t}:{b+4*t+3}], v2, {srd}, s31 offen nt")
        for n in range(3): issue(n)
        A("s_barrier")
        self.get_tag()
        if self.stamps: A("v_mov_b32 v29, 0")
        self.fstamp(0)
        A("s_waitcnt vmcnt(42)")
        self.fstamp(1)
        self.ln()
        self.fstamp(2)
        self.masks()
        A("v_lshrrev_b32 v3, 3, v0")
        A("v_lshlrev_b32 v3, 2, v3")
        for n in range(8):
            m, q = chunks[n]
            for t in range(14):
                A(f"ds_read_b32 v{32+t}, v3 offset:{L_XD + q*448 + t*32}")
            inflight = min(8, n + 3) - (n + 1)
            A(f"s_waitcnt vmcnt({14*inflight}) lgkmcnt(0)")
            acc = 56 if m == 0 else 60
            b = GB[n % 3]
            for t in range(14):
                a = 48 + 4 * (t & 1)
                for k in range(4):
                    A(f"v_and_b32 v{a+k}, v{8+k}, v{32+t}")
                self.nop(2)
                src = "0" if (t == 0 and q == 0) else f"v[{acc}:{acc+3}]"
                A(f"v_mfma_f32_16x16x32_bf16 v[{acc}:{acc+3}], v[{a}:{a+3}], v[{b+4*t}:{b+4*t+3}], {src}")
            if n + 3 < 8: issue(n + 3)
            self.fstamp(3 + n)
        self.srd(20, 52, 1792 * 896)
        A("v_and_b32 v4, 15, v0")
        A("v_lshrrev_b32 v5, 4, v0")
        A("v_mul_u32_u24 v6, 896, v5")
        A("v_lshl_add_u32 v6, v4, 4, v6")
        A("s_lshl_b32 s30, s33, 6")
        A("s_mul_i32 s30, s30, 896")
        DB = [64, 128, 192]
        def issue_d(n):
            b = DB[n % 3]
            for tt in range(4):
                A(f"s_add_u32 s31, s30, {(n*4+tt)*4*896}")
                for cb in range(4):
                    r = b + (tt * 4 + cb) * 4
                    A(f"buffer_load_dwordx4 v[{r}:{r+3}], v6, s[20:23], s31 offen offset:{cb*256} nt")
        for n in range(3): issue_d(n)
        A("v_lshlrev_b32 v7, 4, v0")
        self.nop(4)
        A(f"ds_write_b128 v7, v[56:59] offset:{L_P}")
        A(f"ds_write_b128 v7, v[60:63] offset:{L_P+1024}")
        A("v_and_b32 v2, 7, v0")
        A("v_bfe_u32 v3, v0, 3, 1")
        A("v_lshl_add_u32 v7, v3, 4, v2")
        A("v_lshlrev_b32 v7, 4, v7")
        A("s_waitcnt lgkmcnt(0)")
        A(f"ds_read_b128 v[32:35], v7 offset:{L_P}")
        A(f"ds_read_b128 v[36:39], v7 offset:{L_P+640}")
        A(f"ds_read_b128 v[40:43], v7 offset:{L_P+1024}")
        A(f"ds_read_b128 v[44:47], v7 offset:{L_P+1024+640}")
        A("s_waitcnt lgkmcnt(0)")
        for k in range(4):
            A(f"v_add_f32 v{32+k}, v{32+k}, v{36+k}")
            A(f"v_add_f32 v{40+k}, v{40+k}, v{44+k}")
            self.bf16r(f"v{32+k}")
            self.bf16r(f"v{40+k}")
            A(f"v_max_f32 v{32+k}, 0, v{32+k}")
            A(f"v_mul_f32 v{32+k}, v{32+k}, v{40+k}")
            A(f"v_cvt_pk_bf16_f32 v{32+k}, v{32+k}, v{32+k}")
        A("v_lshlrev_b32 v2, 5, v2")
        A("v_lshl_add_u32 v2, v3, 4, v2")
        self.setexec(0xffff)
        A(f"ds_write_b128 v2, v[32:35] offset:{L_HD}")
        self.setexec(-1)
        A("s_waitcnt lgkmcnt(0)")
        A("v_lshlrev_b32 v3, 2, v5")
        for t in range(16):
            A(f"ds_read_b32 v{12+t}, v3 offset:{L_HD + t*16}")
        A("s_waitcnt lgkmcnt(0)")
        for n in range(4):
            inflight = min(4, n + 3) - (n + 1)
            A(f"s_waitcnt vmcnt({16*inflight})")
            b = DB[n % 3]
            for tt in range(4):
                t = n * 4 + tt
                a = 48 + 4 * (t & 1)
                for k in range(4):
                    A(f"v_and_b32 v{a+k}, v{8+k}, v{12+t}")
                self.nop(2)
                for cb in range(4):
                    r = b + (tt * 4 + cb) * 4
                    src = "0" if t == 0 else f"v[{32+4*cb}:{35+4*cb}]"
                    A(f"v_mfma_f32_16x16x32_bf16 v[{32+4*cb}:{35+4*cb}], v[{a}:{a+3}], v[{r}:{r+3}], {src}")
            if n + 3 < 4: issue_d(n + 3)
            self.fstamp(12 + n)
        for cb in range(4):
            A(f"v_mov_b32 v{65+4*cb}, {TAG}"); A(f"v_mov_b32 v{67+4*cb}, {TAG}")
        A("v_cmp_lt_u32 s[78:79], 31, v0")
        A("v_lshlrev_b32 v6, 6, v4")
        A("v_and_b32 v7, 1, v5")
        A("v_lshl_add_u32 v6, v7, 5, v6")
        A("v_lshrrev_b32 v7, 1, v5")
        A("v_lshl_add_u32 v6, v7, 4, v6")
        A("s_add_u32 s31, s33, 256")
        A(f"s_mul_i32 s31, s31, {YP_STRIDE}")
        A(f"s_add_u32 s31, s31, {YP_OFF}")
        self.nop(2)
        for cb in range(4):
            A(f"v_cndmask_b32 v{64+4*cb}, v{32+4*cb}, v{34+4*cb}, s[78:79]")
            A(f"v_cndmask_b32 v{66+4*cb}, v{33+4*cb}, v{35+4*cb}, s[78:79]")
            if cb == 3: self.setexec(0x00ff00ff00ff00ff)
            A(f"buffer_store_dwordx4 v[{64+4*cb}:{67+4*cb}], v6, s[16:19], s31 offen offset:{cb*1024} sc1")
        self.setexec(-1)
        A("s_waitcnt vmcnt(0)")
        if self.stamps:
            self.fstamp(16)
            A("v_lshlrev_b32 v6, 2, v0")
            A("s_lshl_b32 s31, s33, 8")
            A(f"s_add_u32 s31, s31, {ST_OFF + 0x120000}")
            A("buffer_store_dword v29, v6, s[16:19], s31 offen")
            A("s_waitcnt vmcnt(0)")
        A("s_mov_b32 s32, 2")
        A("s_branch L_prefetch")

    def worker(self):
        A = self.A; C = self.C
        self.label("L_worker")
        A("s_cmp_eq_u32 s28, 2")
        w0 = self.new("w")
        A(f"s_cbranch_scc0 {w0}")
        A(f"s_cmp_eq_u32 s3, {NWK-1}")
        A("s_cbranch_scc1 L_ffn")
        self.label(w0)
        A("s_cmp_eq_u32 s28, 0")
        A("s_cbranch_scc1 L_wroleQ")
        A("s_mov_b32 s32, 1")
        A("s_branch L_prefetch")

        C("role Q: q strip producer (64 rows per wave)")
        self.label("L_wroleQ")
        self.srd(20, 42, 448 * 8192)
        A("v_lshrrev_b32 v62, 3, v0")
        A("v_lshlrev_b32 v62, 13, v62")
        A("v_and_b32 v1, 7, v0")
        A("v_lshl_add_u32 v62, v1, 4, v62")
        A(f"s_lshl_b32 s30, s3, 19")
        A("s_lshl_b32 s31, s29, 7")
        A("s_add_u32 s30, s30, s31")
        for t in range(8):
            A(f"s_add_u32 s31, s30, {t*8*8192}")
            A(f"buffer_load_dwordx4 v[{192+4*t}:{195+4*t}], v62, s[20:23], s31 offen nt")
        self.masks()
        A("s_barrier")
        A("v_lshrrev_b32 v63, 3, v0")
        A("v_lshlrev_b32 v63, 2, v63")
        A(f"s_lshl_b32 s31, s3, 8")
        A(f"s_add_u32 s31, s31, {L_XD}")
        A("v_add_u32 v63, s31, v63")
        A("s_barrier")
        for t in range(8):
            A(f"ds_read_b32 v{32+t}, v63 offset:{t*32}")
        A("s_waitcnt vmcnt(0) lgkmcnt(0)")
        self.gemv_strip(192, 56, nt=8)
        A("v_lshlrev_b32 v62, 4, v0")
        A("s_lshl_b32 s31, s3, 10")
        A(f"s_add_u32 s31, s31, {L_P}")
        A("v_add_u32 v62, s31, v62")
        self.nop(8)
        A("ds_write_b128 v62, v[56:59]")
        A("s_waitcnt lgkmcnt(0)")
        A("s_barrier")
        A("s_barrier")
        self.label("L_prefetch0")
        A("s_mov_b32 s32, 0")

        C("staggered prefetch of the 3 static items")
        self.label("L_prefetch")
        A("v_and_b32 v2, 15, v0")
        A("v_lshrrev_b32 v3, 4, v0")
        A("v_lshrrev_b32 v4, 2, v2")
        A("v_lshlrev_b32 v4, 9, v4")
        A("v_lshl_add_u32 v4, v3, 6, v4")
        A("v_and_b32 v1, 3, v2")
        A("v_lshl_add_u32 v4, v1, 4, v4")
        A("v_add_u32 v5, 4096, v4")
        A("v_lshlrev_b32 v6, 9, v3")
        A("v_lshl_add_u32 v6, v2, 4, v6")
        A("v_add_u32 v7, 4096, v6")
        A(f"s_mul_i32 s61, s6, {self.RX}")
        A(f"s_mul_i32 s30, s7, {NWK}")
        A("s_add_u32 s61, s61, s30")
        A("s_add_u32 s61, s61, s3")
        A("s_lshl_b32 s61, s61, 13")
        A(f"s_add_u32 s70, s61, {4*NWK*8192}")
        A(f"s_add_u32 s71, s61, {8*NWK*8192}")
        seq = [("K", 0, "s61"), ("V", 0, "s61"), ("K", 1, "s70"), ("V", 1, "s70"), ("K", 2, "s71"), ("V", 2, "s71")]
        first = self.PF0
        for n in range(first): self.ld_tile(*seq[n])
        A("s_cmp_lg_u32 s32, 1")
        w1 = self.new("w")
        A(f"s_cbranch_scc1 {w1}")
        A("s_barrier")
        self.label(w1)
        self.masks()
        self.get_tag()
        A("s_cmp_eq_u32 s32, 2")
        A("s_cbranch_scc1 L_burst")
        for n in range(first, 6):
            A(f"s_waitcnt vmcnt({8*(self.PF-1)})")
            self.ld_tile(*seq[n])
        A("s_branch L_pfdone")
        self.label("L_burst")
        for n in range(first, 6):
            self.ld_tile(*seq[n])
        A(f"s_waitcnt vmcnt({8*self.PF})")
        self.label("L_pfdone")
        self.Qinit = [("K", 2, 2), ("V", 2, 2)][2 - self.PF:]
        A(f"v_mov_b32 v62, {L_QF}")
        sq = self.new("spinq")
        self.label(sq)
        A("ds_read_b32 v31, v62")
        A("s_waitcnt lgkmcnt(0)")
        A("v_readfirstlane_b32 s66, v31")
        self.nop(2)
        A("s_cmp_lg_u32 s66, 0")
        sqd = self.new("spinqd")
        A(f"s_cbranch_scc1 {sqd}")
        A("s_sleep 1")
        A(f"s_branch {sq}")
        self.label(sqd)
        A("v_lshrrev_b32 v62, 3, v2")
        A("v_lshlrev_b32 v62, 9, v62")
        A("v_lshl_add_u32 v62, v3, 6, v62")
        A("v_and_b32 v1, 3, v2")
        A("v_lshl_add_u32 v62, v1, 4, v62")
        A(f"ds_read_b128 v[12:15], v62 offset:{L_Q}")
        A(f"ds_read_b128 v[16:19], v62 offset:{L_Q+256}")
        for k in range(8):
            A(f"v_mov_b32 v{20+k}, 0")
        A("v_mov_b32 v28, 0xff800000")
        A("v_mov_b32 v29, 0xff800000")
        A("v_mov_b32 v30, 0")
        A(f"v_mov_b32 v60, {L_CNT}")
        A("v_mov_b32 v61, 1")
        A("s_mov_b32 s64, -1")
        A("s_mov_b32 s65, 0")
        A("s_waitcnt lgkmcnt(0)")
        if self.stamps:
            A("v_mov_b32 v63, 0")
            A("v_mov_b32 v1, 0")
            A("s_mov_b32 s94, 0")
            A("s_mov_b32 s95, -1")
            A("s_mov_b32 s69, -1")
            self.wstamp()
        rare = []
        drains = []
        Q = list(self.Qinit)
        def wait(kind, item):
            idxs = [i for i, q in enumerate(Q) if q[0] == kind and q[1] == item]
            if not idxs: return
            idx = idxs[0]
            after = len(Q) - idx - 1
            A(f"s_waitcnt vmcnt({8*after})")
            del Q[:idx + 1]
        def process(item, buf, refill, nxt, pending):
            if refill: self.pop_issue()
            wait("K", item)
            self.qk(buf)
            if refill:
                d = self.new("drain")
                drains.append((d, item, buf, list(Q), list(pending)))
                self.pop_resolve(d)
                self.ld_tile("K", buf, "s69"); Q.append(("K", nxt, buf))
            else:
                self.nop(8)
            self.softmax(rare)
            wait("V", item)
            self.pv(buf)
            if refill:
                self.ld_tile("V", buf, "s69"); Q.append(("V", nxt, buf))
        RS = self.RS
        if self.ND < NWK:
            A(f"s_cmp_ge_u32 s3, {self.ND}")
            A("s_cbranch_scc1 L_static_only")
        if self.direct:
            assert RS == 3
            Q0 = [("K", 0, 0), ("V", 0, 0), ("K", 1, 1), ("V", 1, 1), ("K", 2, 2), ("V", 2, 2)]
        else:
            nxt = 3
            pend = [(1, 1), (2, 2)]
            for n in range(3):
                rf = n < RS
                pending = [(it, b) for (it, b) in pend if it > n]
                pending += [(3 + k, k) for k in range(min(n, RS))]
                process(n, n, rf, nxt, pending)
                if rf: nxt += 1
            Q0 = [(k, it - 3, b) for (k, it, b) in Q]
        self.label("L_loop")
        Q[:] = list(Q0)
        for n in range(RS):
            pending = [(m, m) for m in range(n + 1, RS)] + [(RS + k, k) for k in range(n)]
            process(n, n, True, n + RS, pending)
        Q1 = [(k, it - RS, b) for (k, it, b) in Q]
        assert Q1 == Q0, (Q0, Q1)
        A("s_branch L_loop")
        for (d, item, buf, q, pending) in drains:
            self.label(d)
            Q[:] = list(q)
            self.nop(8)
            self.softmax(rare)
            wait("V", item)
            self.pv(buf)
            for (it, b) in pending:
                wait("K", it)
                self.qk(b)
                self.nop(8)
                self.softmax(rare)
                wait("V", it)
                self.pv(b)
            assert not Q, Q
            A("s_branch L_wfin")
        if self.ND < NWK:
            self.label("L_static_only")
            Q[:] = list(self.Qinit)
            for n in range(3):
                process(n, n, False, None, [])
            A("s_branch L_wfin")
        for (r, b) in rare:
            self.rare_block(r, b)
        self.label("L_wfin")
        if self.stamps:
            A("v_lshlrev_b32 v62, 2, v0")
            A("s_lshl_b32 s31, s2, 3")
            A("s_add_u32 s31, s31, s3")
            A("s_lshl_b32 s31, s31, 8")
            A(f"s_add_u32 s31, s31, {ST_OFF + 0x10000}")
            A("buffer_store_dword v63, v62, s[16:19], s31 offen")
            A("s_add_u32 s31, s31, 0x80000")
            A("buffer_store_dword v1, v62, s[16:19], s31 offen")
        self.allreduce("add", "v30", "v31", steps=("p16", "p32"))
        A("v_lshrrev_b32 v62, 1, v3")
        A("v_lshlrev_b32 v62, 10, v62")
        A("v_lshl_add_u32 v62, v2, 5, v62")
        A("v_and_b32 v1, 1, v3")
        A("v_lshl_add_u32 v62, v1, 4, v62")
        A(f"s_mul_i32 s31, s3, 2304")
        A(f"s_add_u32 s31, s31, {L_M}")
        A("v_add_u32 v62, s31, v62")
        self.nop(4)
        A("ds_write_b128 v62, v[20:23]")
        A("ds_write_b128 v62, v[24:27] offset:512")
        A("v_lshrrev_b32 v63, 3, v0")
        A("v_lshlrev_b32 v63, 3, v63")
        A("v_add_u32 v63, s31, v63")
        A("v_mov_b32 v29, v30")
        self.setexec(0x101)
        A("ds_write_b64 v63, v[28:29] offset:2048")
        self.setexec(-1)
        A("s_waitcnt lgkmcnt(0)")
        A(f"s_mul_i32 s31, s2, {REC_STRIDE}")
        A(f"s_add_u32 s31, s31, {REC_OFF}")
        A(f"v_mov_b32 v2, {L_M + 2048}")
        A("v_lshlrev_b32 v3, 4, v0")
        A("v_lshlrev_b32 v4, 3, v0")
        A(f"v_mov_b32 v33, {TAG}"); A(f"v_mov_b32 v35, {TAG}")
        A("s_lshl_b32 s30, s3, 9")
        A("v_add_u32 v4, s30, v4")
        A("s_lshl_b32 s30, s3, 10")
        A("s_add_u32 s30, s30, s31")
        A("s_lshr_b32 s66, s3, 1")
        A("s_lshl_b32 s66, s66, 3")
        A("v_add_u32 v5, s66, v2")
        A("v_and_b32 v6, 1, v0")
        A("v_lshlrev_b32 v6, 3, v6")
        A("v_add_u32 v6, v6, v2")
        A("s_barrier")
        A("s_cmp_eq_u32 s3, 5")
        A("s_cbranch_scc1 L_wffn")
        A("s_cmp_gt_u32 s3, 4")
        A("s_cbranch_scc1 L_end")
        A("s_cmp_eq_u32 s3, 4")
        A("s_cbranch_scc1 L_whead")
        C("record quarter k = wave: elements h*256 + half*128 + 2*lane + {0,1}")
        for w in range(NWK):
            A(f"ds_read_b64 v[{64+2*w}:{65+2*w}], v5 offset:{w*2304}")
        for w in range(NWK):
            A(f"ds_read_b64 v[{80+2*w}:{81+2*w}], v4 offset:{L_M + w*2304}")
        A(f"s_waitcnt lgkmcnt({NWK})")
        A("v_max_f32 v36, v64, v66")
        for w in range(2, NWK):
            A(f"v_max_f32 v36, v36, v{64+2*w}")
        for w in range(NWK):
            A(f"v_sub_f32 v{64+2*w}, v{64+2*w}, v36")
        for w in range(NWK):
            A(f"v_mul_f32 v{64+2*w}, s60, v{64+2*w}")
        for w in range(NWK):
            A(f"v_exp_f32 v{64+2*w}, v{64+2*w}")
        A("s_waitcnt lgkmcnt(0)")
        A("v_mul_f32 v32, v64, v80"); A("v_mul_f32 v34, v64, v81")
        for w in range(1, NWK):
            A(f"v_fmac_f32 v32, v{64+2*w}, v{80+2*w}")
            A(f"v_fmac_f32 v34, v{64+2*w}, v{81+2*w}")
        A("buffer_store_dwordx4 v[32:35], v3, s[16:19], s30 offen sc1")
        if self.stamps and self.ackst:
            A("s_memrealtime s[90:91]")
            A("s_waitcnt vmcnt(0)")
            A("s_memrealtime s[92:93]")
            A("s_waitcnt lgkmcnt(0)")
            A("v_mov_b32 v36, s90"); A("v_mov_b32 v37, s92")
            A("s_lshl_b32 s66, s2, 5")
            A("s_lshl_b32 s67, s3, 3")
            A("s_add_u32 s66, s66, s67")
            A(f"s_add_u32 s66, s66, {ST_OFF + 0x110000}")
            A("v_mov_b32 v38, 0")
            self.setexec(1)
            A("buffer_store_dwordx2 v[36:37], v38, s[16:19], s66 offen")
            self.setexec(-1)
        A("s_cmp_ge_u32 s89, 112")
        A("s_cbranch_scc1 L_end")
        A("s_branch L_hop2")
        self.label("L_whead")
        C("header line {M, tag, L, tag} x 2 heads (lane parity = head), written as one full line")
        for w in range(NWK):
            A(f"ds_read_b64 v[{64+2*w}:{65+2*w}], v6 offset:{w*2304}")
        A("s_waitcnt lgkmcnt(0)")
        A("v_max_f32 v32, v64, v66")
        for w in range(2, NWK):
            A(f"v_max_f32 v32, v32, v{64+2*w}")
        for w in range(NWK):
            A(f"v_sub_f32 v{64+2*w}, v{64+2*w}, v32")
        for w in range(NWK):
            A(f"v_mul_f32 v{64+2*w}, s60, v{64+2*w}")
        for w in range(NWK):
            A(f"v_exp_f32 v{64+2*w}, v{64+2*w}")
        A("s_nop 0")
        A("v_mul_f32 v34, v64, v65")
        for w in range(1, NWK):
            A(f"v_fmac_f32 v34, v{64+2*w}, v{65+2*w}")
        A("s_add_u32 s30, s31, 4096")
        self.setexec(0xff)
        A("buffer_store_dwordx4 v[32:35], v3, s[16:19], s30 offen sc1")
        A("s_branch L_end")
        self.label("L_wffn")
        A("s_cmp_ge_u32 s89, 112")
        A("s_cbranch_scc1 L_end")
        self.ffn_part()
        A("s_waitcnt lgkmcnt(0)")
        A("s_barrier")
        A("s_barrier")
        A("s_branch L_end")
        self.label("L_hop2")
        A("s_barrier")
        C("hop 2: thread t = w*64+lane polls ypart[t][4b..4b+3] granules")
        A("s_lshl_b32 s31, s3, 6")
        A("v_add_u32 v1, s31, v0")
        A(f"v_mul_u32_u24 v62, {YP_STRIDE}, v1")
        A("s_lshl_b32 s31, s89, 5")
        A(f"s_add_u32 s31, s31, {YP_OFF}")
        if self.pipe:
            p = self.new("poll2"); g0 = self.new("got0"); g1 = self.new("got1"); cont = self.new("cont2")
            PS = [64, 80]
            def issue(P):
                A(f"buffer_load_dwordx4 v[{P}:{P+3}], v62, s[16:19], s31 offen sc1")
                A(f"buffer_load_dwordx4 v[{P+4}:{P+7}], v62, s[16:19], s31 offen offset:16 sc1")
            issue(PS[0])
            self.label(p)
            for (cur, oth, gl) in ((0, 1, g0), (1, 0, g1)):
                issue(PS[oth])
                A("s_waitcnt vmcnt(2)")
                self.check_tags([f"v{PS[cur]+1+2*k}" for k in range(4)], "v40")
                A(f"s_cbranch_vccz {gl}")
            A(f"s_branch {p}")
            for (cur, gl) in ((1, g1), (0, g0)):
                self.label(gl)
                P = PS[cur]
                for k in range(4):
                    A(f"v_mov_b32 v{32+2*k}, v{P+2*k}")
                if cur == 1: A(f"s_branch {cont}")
            self.label(cont)
        else:
            p = self.new("poll2"); pd = self.new("poll2d")
            self.label(p)
            A("buffer_load_dwordx4 v[32:35], v62, s[16:19], s31 offen sc1")
            A("buffer_load_dwordx4 v[36:39], v62, s[16:19], s31 offen offset:16 sc1")
            A("s_waitcnt vmcnt(0)")
            self.check_tags(["v33", "v35", "v37", "v39"], "v40")
            A(f"s_cbranch_vccz {pd}")
            if self.masked: A("s_mov_b64 exec, vcc")
            if self.sleep2: A(f"s_sleep {self.sleep2}")
            A(f"s_branch {p}")
            self.label(pd)
            self.setexec(-1)
        self.allreduce_multi("add", ["v32", "v34", "v36", "v38"], ["v40", "v41", "v42", "v43"], ("q1", "q2", "hm", "rm", "p16", "p32"))
        A("v_mov_b32 v33, v34"); A("v_mov_b32 v34, v36"); A("v_mov_b32 v35, v38")
        A("s_lshl_b32 s31, s3, 4")
        A(f"s_add_u32 s31, s31, {L_R}")
        A("v_mov_b32 v62, s31")
        self.setexec(1)
        A("ds_write_b128 v62, v[32:35]")
        self.setexec(-1)
        A("s_waitcnt lgkmcnt(0)")
        A("s_barrier")
        A("s_branch L_end")

    def check_tags(self, regs, tmp, tmp2="v63"):
        A = self.A
        A(f"v_xor_b32 {tmp}, {TAG}, {regs[0]}")
        for r in regs[1:]:
            A(f"v_xor_b32 {tmp2}, {TAG}, {r}")
            A(f"v_or_b32 {tmp}, {tmp}, {tmp2}")
        A(f"v_cmp_ne_u32 vcc, 0, {tmp}")
        self.nop(1)

    def ffn_part(self):
        A = self.A
        self.C("FFN part of hop 2 (wg < 112)")
        A(f"v_mul_u32_u24 v64, {YP_STRIDE}, v0")
        A("s_lshl_b32 s31, s89, 5")
        A(f"s_add_u32 s31, s31, {YP_OFF + 256*YP_STRIDE}")
        p = self.new("pollf"); pd = self.new("pollfd")
        self.setexec(0xfffffff)
        self.label(p)
        A("buffer_load_dwordx4 v[68:71], v64, s[16:19], s31 offen sc1")
        A("buffer_load_dwordx4 v[72:75], v64, s[16:19], s31 offen offset:16 sc1")
        A("s_waitcnt vmcnt(0)")
        self.check_tags(["v69", "v71", "v73", "v75"], "v65", tmp2="v66")
        A(f"s_cbranch_vccz {pd}")
        A("s_sleep 8")
        if not self.allN: A(f"s_branch {p}")
        self.label(pd)
        self.setexec(-1)
        A("v_cmp_gt_u32 vcc, 28, v0")
        self.nop(2)
        for k in range(4):
            A(f"v_cndmask_b32 v{68+2*k}, 0, v{68+2*k}, vcc")
        self.srd(20, 36, 896)
        A("s_lshl_b32 s31, s89, 3")
        A("v_mov_b32 v64, 0")
        A("buffer_load_dwordx2 v[80:81], v64, s[20:23], s31 offen nt")
        self.allreduce_multi("add", ["v68", "v70", "v72", "v74"], ["v65", "v66", "v67", "v76"], ("q1", "q2", "hm", "rm", "p16", "p32"))
        for k in range(4):
            self.bf16r(f"v{68+2*k}")
        A("v_mov_b32 v76, v68"); A("v_mov_b32 v77, v70"); A("v_mov_b32 v78, v72"); A("v_mov_b32 v79, v74")
        A(f"v_mov_b32 v64, {L_FX}")
        A("s_waitcnt vmcnt(0)")
        self.setexec(1)
        A("ds_write_b128 v64, v[76:79]")
        A("ds_write_b64 v64, v[80:81] offset:16")
        self.setexec(-1)

    def control(self):
        A = self.A; C = self.C
        self.label("L_control")
        self.stamp(0)
        self.srd(20, 36, 896)
        A("v_lshlrev_b32 v1, 4, v0")
        A("s_cmp_lg_u32 s28, 0")
        x0 = self.new("x")
        A(f"s_cbranch_scc1 {x0}")
        A("buffer_load_dwordx4 v[8:11], v1, s[20:23], 0 offen nt")
        self.label(x0)
        A("v_mov_b32 v4, -1"); A("v_mov_b32 v5, -1"); A("v_mov_b32 v6, -1"); A("v_mov_b32 v7, -1")
        for k in range(TBL_KB):
            A(f"ds_write_b128 v1, v[4:7] offset:{L_TBL + k*1024}")
        A("v_mov_b32 v2, 0")
        A(f"v_mov_b32 v3, {1 if self.noq else 0}")
        A(f"ds_write_b64 v2, v[2:3] offset:{L_CNT}")
        A("s_waitcnt lgkmcnt(0)")
        A("s_barrier")
        self.get_tag()
        A("s_cmp_lg_u32 s28, 0")
        A("s_cbranch_scc1 L_cpollq")
        C("role Q: producer 8g zeroes the ticket counters of head g")
        A("s_and_b32 s30, s29, 7")
        A("s_cmp_lg_u32 s30, 0")
        A("s_cbranch_scc1 L_cln")
        self.setexec(0x1ff)
        A("v_lshlrev_b32 v3, 8, v0")
        A("s_lshl_b32 s30, s29, 9")
        A(f"s_add_u32 s31, s30, {CTR_OFF}")
        A("buffer_store_dword v2, v3, s[16:19], s31 offen sc1")
        self.setexec(-1)
        self.label("L_cln")
        A("s_waitcnt vmcnt(0)")
        self.ln()
        A("s_barrier")
        self.stamp(1)
        A("v_and_b32 v2, 7, v0")
        A("v_bfe_u32 v3, v0, 3, 1")
        A("v_lshl_add_u32 v2, v3, 4, v2")
        A("v_lshlrev_b32 v2, 4, v2")
        A(f"v_mov_b32 v17, {TAG}")
        A(f"v_mov_b32 v19, {TAG}")
        A("v_and_b32 v4, 7, v0")
        A("v_lshlrev_b32 v4, 5, v4")
        A("v_lshl_add_u32 v4, v3, 4, v4")
        A("s_lshl_b32 s31, s29, 8")
        A(f"s_add_u32 s31, s31, {Q_OFF}")
        A("s_barrier")
        for w in range(NWK):
            A(f"ds_read_b128 v[{32+8*w}:{35+8*w}], v2 offset:{L_P + w*1024}")
            A(f"ds_read_b128 v[{36+8*w}:{39+8*w}], v2 offset:{L_P + w*1024 + 640}")
        A("s_waitcnt lgkmcnt(0)")
        for k in range(4):
            A(f"v_add_f32 v{12+k}, v{32+k}, v{36+k}")
        for w in range(1, NWK):
            for k in range(4):
                A(f"v_add_f32 v{32+8*w+k}, v{32+8*w+k}, v{36+8*w+k}")
            for k in range(4):
                A(f"v_add_f32 v{12+k}, v{12+k}, v{32+8*w+k}")
        A("v_cvt_pk_bf16_f32 v16, v12, v13")
        A("v_cvt_pk_bf16_f32 v18, v14, v15")
        self.setexec(0xffff)
        A("buffer_store_dwordx4 v[16:19], v4, s[16:19], s31 offen sc1")
        self.setexec(-1)
        A("s_barrier")
        self.stamp(2)
        C("poll q granules of this head group")
        self.label("L_cpollq")
        A("v_lshlrev_b32 v2, 4, v0")
        A("s_lshl_b32 s31, s4, 11")
        A(f"s_add_u32 s31, s31, {Q_OFF}")
        p = self.new("pollq"); pd = self.new("pollqd")
        self.label(p)
        A("buffer_load_dwordx4 v[4:7], v2, s[16:19], s31 offen sc1")
        A("buffer_load_dwordx4 v[8:11], v2, s[16:19], s31 offen offset:1024 sc1")
        A("s_waitcnt vmcnt(0)")
        self.check_tags(["v5", "v7", "v9", "v11"], "v12")
        A(f"s_cbranch_vccz {pd}")
        if not self.allN: A(f"s_branch {p}")
        self.label(pd)
        self.stamp(3)
        A("v_mov_b32 v5, v6")
        A("v_mov_b32 v9, v10")
        A("v_lshlrev_b32 v3, 3, v0")
        A(f"ds_write_b64 v3, v[4:5] offset:{L_Q}")
        A(f"ds_write_b64 v3, v[8:9] offset:{L_Q+512}")
        A("v_mov_b32 v4, 1")
        A(f"v_mov_b32 v5, {L_QF}")
        A("s_waitcnt lgkmcnt(0)")
        A("ds_write_b32 v5, v4")
        self.stamp(4)
        if self.warm == 2:
            C("touch this workgroup's hand-off lines early with loads")
            A("v_lshlrev_b32 v2, 4, v0")
            A(f"s_mul_i32 s31, s2, {REC_STRIDE}")
            A(f"s_add_u32 s31, s31, {REC_OFF}")
            for k in range(4):
                A(f"buffer_load_dwordx4 v[{192+4*k}:{195+4*k}], v2, s[16:19], s31 offen offset:{k*1024} sc1")
            A("s_add_u32 s31, s31, 4096")
            self.setexec(0xff)
            A("buffer_load_dwordx4 v[208:211], v2, s[16:19], s31 offen sc1")
            self.setexec(-1)
            A(f"s_mul_i32 s31, s2, {YP_STRIDE}")
            A(f"s_add_u32 s31, s31, {YP_OFF}")
            for k in range(3):
                A(f"buffer_load_dwordx4 v[{212+4*k}:{215+4*k}], v2, s[16:19], s31 offen offset:{k*1024} sc1")
            self.setexec(0xffffffff)
            A(f"buffer_load_dwordx4 v[224:227], v2, s[16:19], s31 offen offset:3072 sc1")
            self.setexec(-1)
        if self.warm == 1:
            C("touch this workgroup's hand-off lines early (stale tag) so the final stores / polls find them in the memory-side cache")
            A("v_mov_b32 v4, 0"); A("v_mov_b32 v5, s35"); A("v_mov_b32 v6, 0"); A("v_mov_b32 v7, s35")
            A("v_lshlrev_b32 v2, 4, v0")
            A(f"s_mul_i32 s31, s2, {REC_STRIDE}")
            A(f"s_add_u32 s31, s31, {REC_OFF}")
            for k in range(4):
                A(f"buffer_store_dwordx4 v[4:7], v2, s[16:19], s31 offen offset:{k*1024} sc1")
            A("s_add_u32 s31, s31, 4096")
            self.setexec(3)
            A("buffer_store_dwordx4 v[4:7], v2, s[16:19], s31 offen sc1")
            self.setexec(-1)
            A(f"s_mul_i32 s31, s2, {YP_STRIDE}")
            A(f"s_add_u32 s31, s31, {YP_OFF}")
            for k in range(3):
                A(f"buffer_store_dwordx4 v[4:7], v2, s[16:19], s31 offen offset:{k*1024} sc1")
            self.setexec(0xffffffff)
            A(f"buffer_store_dwordx4 v[4:7], v2, s[16:19], s31 offen offset:3072 sc1")
            self.setexec(-1)
        if not self.latewo:
            self.srd(20, 44, 4096 * 896)
            A("v_and_b32 v2, 15, v0")
            A("v_lshrrev_b32 v3, 4, v0")
            A("v_mul_u32_u24 v4, 896, v3")
            A("v_lshl_add_u32 v4, v2, 4, v4")
            A("s_lshl_b32 s30, s2, 4")
            A("s_mul_i32 s30, s30, 896")
            for t in range(4):
                A(f"s_add_u32 s31, s30, {t*4*896}")
                for cb in range(4):
                    b = 128 + (t * 4 + cb) * 4
                    A(f"buffer_load_dwordx4 v[{b}:{b+3}], v4, s[20:23], s31 offen offset:{cb*256} nt")
        self.masks()
        C("ticket loop: home range -> common pool of the head -> steal from other ranges")
        RX = self.RX
        DX = RX - SPR
        DC = 4096 - 8 * RX
        A("s_mov_b32 s66, 0")
        A("s_mov_b32 s67, s6")
        A(f"s_mov_b32 s77, {DX}")
        A(f"s_mul_i32 s80, s6, {RX}")
        A(f"s_add_u32 s80, s80, {SPR}")
        A("s_mov_b32 s79, 0")
        A("s_mov_b32 s75, 0")
        A("s_mov_b32 s78, 4")
        A(f"s_mov_b32 s76, {self.LVL}")
        A(f"v_mov_b32 v13, {L_CNT}")
        A("s_lshl_b32 s68, s4, 12")
        A(f"s_add_u32 s68, s68, {CTR_OFF}")
        self.label("L_floop")
        self.label("L_floop1")
        A("ds_read_b32 v14, v13")
        A("s_waitcnt lgkmcnt(0)")
        A("v_readfirstlane_b32 s70, v14")
        self.nop(2)
        A("s_sub_i32 s71, s66, s70")
        A("s_cmp_le_i32 s71, s76")
        A("s_cbranch_scc1 L_fgo0")
        A("s_sleep 2")
        A("s_branch L_floop1")
        self.label("L_fgo0")
        A("s_cmp_lg_u32 s75, 0")
        A("s_cbranch_scc1 L_fnext")
        self.label("L_fgo")
        A("s_lshl_b32 s71, s67, 8")
        A("v_mov_b32 v15, s71")
        A("v_mov_b32 v12, s78")
        self.setexec(1)
        A("buffer_atomic_add v12, v15, s[16:19], s68 offen sc0 sc1")
        A("s_waitcnt vmcnt(0)")
        A("v_readfirstlane_b32 s70, v12")
        self.setexec(-1)
        self.nop(2)
        A("s_cmp_lt_u32 s70, s77")
        A("s_cbranch_scc1 L_fgot")
        self.label("L_fnext")
        A("s_mov_b32 s75, 0")
        A("s_cmp_lg_u32 s79, 0")
        A("s_cbranch_scc1 L_fsteal")
        if DC > 0:
            A("s_mov_b32 s79, 1")
            A("s_mov_b32 s67, 8")
            A(f"s_mov_b32 s77, {DC}")
            A(f"s_mov_b32 s80, {8*RX}")
            A("s_branch L_fgo")
        self.label("L_fsteal")
        A("s_mov_b32 s79, 2")
        A(f"s_mov_b32 s78, {self.NE}")
        A(f"s_mov_b32 s76, {self.LVLE}")
        A("v_lshlrev_b32 v15, 8, v0")
        self.setexec(0xff)
        A("buffer_load_dword v14, v15, s[16:19], s68 offen sc1")
        A("s_waitcnt vmcnt(0)")
        A(f"v_cmp_gt_u32 vcc, {DX}, v14")
        self.setexec(-1)
        self.nop(2)
        A("s_and_b32 s71, vcc_lo, 0xff")
        A("s_cmp_eq_u32 s71, 0")
        A("s_cbranch_scc1 L_fend")
        A("s_lshl_b32 s73, s71, 8")
        A("s_or_b32 s73, s73, s71")
        A("s_add_u32 s74, s6, 1")
        A("s_lshr_b32 s73, s73, s74")
        A("s_ff1_i32_b32 s73, s73")
        A("s_add_u32 s67, s74, s73")
        A("s_and_b32 s67, s67, 7")
        A(f"s_mov_b32 s77, {DX}")
        A(f"s_mul_i32 s80, s67, {RX}")
        A(f"s_add_u32 s80, s80, {SPR}")
        A("s_branch L_fgo")
        self.label("L_fgot")
        A("s_sub_u32 s71, s77, s70")
        A("s_min_u32 s71, s71, s78")
        A("s_add_u32 s73, s80, s70")
        A("v_add_u32 v14, s73, v0")
        A("v_add_u32 v15, s66, v0")
        A("v_lshlrev_b32 v15, 2, v15")
        A("s_lshl_b32 s74, 1, s71")
        A("s_sub_u32 s74, s74, 1")
        A("s_mov_b32 exec_lo, s74")
        A("s_mov_b32 exec_hi, 0")
        A(f"ds_write_b32 v15, v14 offset:{L_TBL}")
        self.setexec(-1)
        A("s_add_u32 s66, s66, s71")
        A("s_add_u32 s70, s70, s71")
        A("s_cmp_ge_u32 s70, s77")
        A("s_cselect_b32 s75, 1, 0")
        A("s_cmp_lg_u32 s79, 1")
        A("s_cbranch_scc1 L_floop")
        A(f"s_cmp_lt_u32 s70, {DC - self.X}")
        A("s_cbranch_scc1 L_floop")
        A(f"s_mov_b32 s78, {self.NE}")
        A(f"s_mov_b32 s76, {self.LVLE}")
        A("s_branch L_floop")
        self.label("L_fend")
        A("v_mov_b32 v14, 4096")
        A("v_add_u32 v15, s66, v0")
        A("v_lshlrev_b32 v15, 2, v15")
        self.setexec(0xff)
        A(f"ds_write_b32 v15, v14 offset:{L_TBL}")
        self.setexec(-1)
        self.stamp(5)
        if self.latewo:
            self.srd(20, 44, 4096 * 896)
            A("v_and_b32 v2, 15, v0")
            A("v_lshrrev_b32 v3, 4, v0")
            A("v_mul_u32_u24 v4, 896, v3")
            A("v_lshl_add_u32 v4, v2, 4, v4")
            A("s_lshl_b32 s30, s2, 4")
            A("s_mul_i32 s30, s30, 896")
            for t in range(4):
                A(f"s_add_u32 s31, s30, {t*4*896}")
                for cb in range(4):
                    b = 128 + (t * 4 + cb) * 4
                    A(f"buffer_load_dwordx4 v[{b}:{b+3}], v4, s[20:23], s31 offen offset:{cb*256} nt")
        self.label("L_cbt1")
        C("hop 1 addresses: lane l: rec 8n + (l>>3), piece l&7 (2 granules)")
        A("v_lshrrev_b32 v96, 3, v0")
        A("v_lshlrev_b32 v96, 13, v96")
        A("v_and_b32 v3, 7, v0")
        A("v_lshl_add_u32 v97, v3, 4, v96")
        A("s_lshl_b32 s30, s4, 18")
        A(f"s_add_u32 s30, s30, {REC_OFF}")
        A("s_lshl_b32 s81, s5, 7")
        A("s_add_u32 s81, s81, s30")
        A("s_lshr_b32 s85, s5, 4")
        A("s_lshl_b32 s85, s85, 4")
        A("s_add_u32 s85, s85, s30")
        A("s_add_u32 s85, s85, 4096")
        for n in range(1, 4):
            A(f"s_add_u32 s{81+n}, s81, {n*0x10000}")
            A(f"s_add_u32 s{85+n}, s85, {n*0x10000}")
        A("s_waitcnt lgkmcnt(0)")
        A("s_barrier")
        self.stamp(6)
        self.stamp(7)
        PS = [192, 224]
        def issue(P):
            for n in range(4):
                A(f"buffer_load_dwordx4 v[{P+4*n}:{P+3+4*n}], v97, s[16:19], s{81+n} offen sc1")
                A(f"buffer_load_dwordx4 v[{P+16+4*n}:{P+19+4*n}], v96, s[16:19], s{85+n} offen sc1")
        if self.pipe:
            p = self.new("poll1"); g0 = self.new("got0"); g1 = self.new("got1"); cont = self.new("cont1")
            if self.stamps: A("s_mov_b32 s93, 0")
            issue(PS[0])
            self.label(p)
            for (cur, oth, gl) in ((0, 1, g0), (1, 0, g1)):
                issue(PS[oth])
                A("s_waitcnt vmcnt(8)")
                if self.stamps:
                    A("s_add_u32 s93, s93, 1")
                    A("s_memrealtime s[90:91]")
                    A("s_waitcnt lgkmcnt(0)")
                    A("s_min_u32 s92, s93, 30")
                    A("s_add_u32 s92, s92, 31")
                    A("s_mov_b32 m0, s92")
                    A("s_nop 0")
                    A("v_writelane_b32 v127, s90, m0")
                self.check_tags([f"v{PS[cur]+1+2*k}" for k in range(16)], "v12")
                A(f"s_cbranch_vccz {gl}")
            A(f"s_branch {p}")
            for (cur, gl) in ((1, g1), (0, g0)):
                self.label(gl)
                P = PS[cur]
                for n in range(4):
                    A(f"v_mov_b32 v{32+4*n}, v{P+4*n}")
                    A(f"v_mov_b32 v{34+4*n}, v{P+2+4*n}")
                    A(f"v_mov_b32 v{64+4*n}, v{P+16+4*n}")
                    A(f"v_mov_b32 v{66+4*n}, v{P+18+4*n}")
                if cur == 1: A(f"s_branch {cont}")
            self.label(cont)
        else:
            p = self.new("poll1"); pd = self.new("poll1d")
            if self.stamps: A("s_mov_b32 s93, 0")
            if self.sleep0: A(f"s_sleep {self.sleep0}")
            self.label(p)
            for n in range(4):
                A(f"buffer_load_dwordx4 v[{32+4*n}:{35+4*n}], v97, s[16:19], s{81+n} offen sc1")
                A(f"buffer_load_dwordx4 v[{64+4*n}:{67+4*n}], v96, s[16:19], s{85+n} offen sc1")
            A("s_waitcnt vmcnt(0)")
            if self.stamps:
                A("s_add_u32 s93, s93, 1")
                A("s_memrealtime s[90:91]")
                A("s_waitcnt lgkmcnt(0)")
                A("s_min_u32 s92, s93, 30")
                A("s_add_u32 s92, s92, 31")
                A("s_mov_b32 m0, s92")
                A("s_nop 0")
                A("v_writelane_b32 v127, s90, m0")
            self.check_tags([f"v{33+2*k}" for k in range(8)] + [f"v{65+2*k}" for k in range(8)], "v12")
            A(f"s_cbranch_vccz {pd}")
            if self.masked: A("s_mov_b64 exec, vcc")
            if self.sleep: A(f"s_sleep {self.sleep}")
            A(f"s_branch {p}")
            self.label(pd)
            self.setexec(-1)
        self.stamp(8)
        if self.stamps: A("v_writelane_b32 v127, s93, 30")
        A("v_max3_f32 v48, v64, v68, v72")
        A("v_max_f32 v48, v48, v76")
        self.allreduce("max", "v48", "v49", steps=("ror8", "p16", "p32"))
        for n in range(4):
            A(f"v_sub_f32 v{64+4*n}, v{64+4*n}, v48")
            A(f"v_mul_f32 v{64+4*n}, s60, v{64+4*n}")
            A(f"v_exp_f32 v{64+4*n}, v{64+4*n}")
        A("s_nop 0")
        A("v_mul_f32 v50, v64, v66"); A("v_mul_f32 v51, v64, v32"); A("v_mul_f32 v52, v64, v34")
        for n in range(1, 4):
            A(f"v_fmac_f32 v50, v{64+4*n}, v{66+4*n}")
            A(f"v_fmac_f32 v51, v{64+4*n}, v{32+4*n}")
            A(f"v_fmac_f32 v52, v{64+4*n}, v{34+4*n}")
        self.allreduce_multi("add", ["v50", "v51", "v52"], ["v53", "v54", "v55"], ("ror8", "p16", "p32"))
        A("v_rcp_f32 v53, v50")
        A("s_nop 0")
        for r in ("v51", "v52"):
            A(f"v_mul_f32 v54, {r}, v53")
            A(f"v_fma_f32 v55, -v54, v50, {r}")
            A(f"v_fma_f32 {r}, v55, v53, v54")
        A("v_lshrrev_b32 v3, 4, v0")
        A("v_and_b32 v5, 1, v3")
        A("v_cmp_eq_u32 vcc, 1, v5"); self.nop(2)
        A("v_cndmask_b32 v51, v51, v52, vcc")
        A("v_cvt_pk_bf16_f32 v51, v51, v51")
        self.nop(2)
        for t in range(4):
            A(f"v_mov_b32_dpp v{40+t}, v51 row_newbcast:{2*t} row_mask:0x3 bank_mask:0xf")
            A(f"v_mov_b32_dpp v{40+t}, v51 row_newbcast:{2*t+1} row_mask:0xc bank_mask:0xf")
        for cb in range(4):
            A(f"v_mov_b32 v{81+4*cb}, {TAG}"); A(f"v_mov_b32 v{83+4*cb}, {TAG}")
        A("v_cmp_lt_u32 s[78:79], 31, v0")
        for t in range(4):
            a = 44 + 4 * (t & 1)
            for k in range(4):
                A(f"v_and_b32 v{a+k}, v{8+k}, v{40+t}")
            self.nop(2)
            for cb in range(4):
                b = 128 + (t * 4 + cb) * 4
                src = "0" if t == 0 else f"v[{64+4*cb}:{67+4*cb}]"
                A(f"v_mfma_f32_16x16x32_bf16 v[{64+4*cb}:{67+4*cb}], v[{a}:{a+3}], v[{b}:{b+3}], {src}")
        A("v_and_b32 v2, 15, v0")
        A("v_lshlrev_b32 v4, 6, v2")
        A("v_and_b32 v5, 1, v3")
        A("v_lshl_add_u32 v4, v5, 5, v4")
        A("v_lshrrev_b32 v5, 1, v3")
        A("v_lshl_add_u32 v4, v5, 4, v4")
        A(f"s_mul_i32 s31, s2, {YP_STRIDE}")
        A(f"s_add_u32 s31, s31, {YP_OFF}")
        self.nop(2)
        for cb in range(4):
            A(f"v_cndmask_b32 v{80+4*cb}, v{64+4*cb}, v{66+4*cb}, s[78:79]")
            A(f"v_cndmask_b32 v{82+4*cb}, v{65+4*cb}, v{67+4*cb}, s[78:79]")
            if cb == 3: self.setexec(0x00ff00ff00ff00ff)
            A(f"buffer_store_dwordx4 v[{80+4*cb}:{83+4*cb}], v4, s[16:19], s31 offen offset:{cb*1024} sc1")
        self.setexec(-1)
        self.stamp(9)
        if self.stamps and self.ackst:
            A("s_waitcnt vmcnt(0)")
            self.stamp(12)
        A("s_cmp_ge_u32 s89, 112")
        A("s_cbranch_scc1 L_cend")
        A("s_barrier")
        self.srd(20, 54, 896)
        A(f"v_mov_b32 v2, {L_R}")
        A("s_barrier")
        A(f"ds_read_b128 v[112:115], v2 offset:{L_FX - L_R}")
        A(f"ds_read_b64 v[120:121], v2 offset:{L_FX - L_R + 16}")
        for w in range(4):
            A(f"ds_read_b128 v[{32+4*w}:{35+4*w}], v2 offset:{w*16}")
        A("s_waitcnt lgkmcnt(0)")
        A("v_lshlrev_b32 v48, 16, v120"); A("v_and_b32 v49, 0xffff0000, v120")
        A("v_lshlrev_b32 v50, 16, v121"); A("v_and_b32 v51, 0xffff0000, v121")
        for k in range(4):
            A(f"v_add_f32 v{32+k}, v{32+k}, v{36+k}")
            A(f"v_add_f32 v{40+k}, v{40+k}, v{44+k}")
            A(f"v_add_f32 v{32+k}, v{32+k}, v{40+k}")
            self.bf16r(f"v{32+k}")
            A(f"v_add_f32 v{32+k}, v{48+k}, v{32+k}")
            self.bf16r(f"v{32+k}")
            A(f"v_add_f32 v{32+k}, v{32+k}, v{112+k}")
        A("v_cvt_pk_bf16_f32 v32, v32, v33")
        A("v_cvt_pk_bf16_f32 v33, v34, v35")
        A("s_lshl_b32 s31, s89, 3")
        A("v_mov_b32 v2, 0")
        self.setexec(1)
        A("buffer_store_dwordx2 v[32:33], v2, s[20:23], s31 offen")
        A("s_cmp_lg_u32 s89, 0")
        e0 = self.new("e")
        A(f"s_cbranch_scc1 {e0}")
        A(f"v_mov_b32 v4, {TAG}")
        A(f"buffer_store_dword v4, v2, s[16:19], 0 offen offset:{EP_OFF}")
        self.label(e0)
        self.setexec(-1)
        self.stamp(10)
        self.label("L_cend")
        if self.dbgst: self.dbg_dump()
        if self.stamps:
            A("v_lshlrev_b32 v2, 2, v0")
            A("s_lshl_b32 s31, s2, 8")
            A(f"s_add_u32 s31, s31, {ST_OFF}")
            A("buffer_store_dword v127, v2, s[16:19], s31 offen")
        A("s_branch L_end")

    def build(self):
        A = self.A
        L = self.L
        L.append(HEADER.rstrip())
        L.append(f"; @launch grid=({NWG},1,1) block=({NW*64},1,1) lds={LDS_SIZE}")
        L.append("""; Design (generated by a script of mine; one persistent launch, 256 workgroups x 8 waves, one workgroup per CU):
;  * hand-offs between workgroups use 8-byte {value, tag} granules written / read with sc1; tag = (word found in d_ws) + 1,
;  * tail: per-workgroup (max, sum, o) record -> 16 output-projection rows per workgroup -> 112 workgroups x 4 output columns.""")
        L.append('.amdgcn_target "amdgcn-amd-amdhsa--gfx950"')
        L.append(".text")
        L.append(f".globl {NAME}_kernel")
        L.append(".p2align 8")
        L.append(f".type {NAME}_kernel,@function")
        L.append(f"{NAME}_kernel:")
        A(f"s_cmp_ge_u32 s2, {NWG}")
        A("s_cbranch_scc1 L_end")
        A("s_load_dwordx16 s[36:51], s[0:1], 0")
        A("s_load_dwordx8 s[52:59], s[0:1], 64")
        A("v_lshrrev_b32 v1, 6, v0")
        A("v_and_b32 v0, 63, v0")
        A("s_lshr_b32 s4, s2, 5")
        A("v_readfirstlane_b32 s3, v1")
        A("s_and_b32 s5, s2, 31")
        A("s_and_b32 s6, s2, 7")
        A("s_lshr_b32 s7, s2, 3")
        A("s_and_b32 s7, s7, 3")
        A("s_lshr_b32 s29, s2, 2")
        A("s_lshr_b32 s33, s5, 2")
        A("s_lshl_b32 s33, s33, 3")
        A("s_add_u32 s33, s33, s4")
        A("s_and_b32 s30, s2, 3")
        A("s_mov_b32 s28, 1")
        A("s_cmp_eq_u32 s30, 0")
        A("s_cselect_b32 s28, 0, s28")
        A("s_cmp_lt_u32 s33, 28")
        A("s_cselect_b32 s31, 2, 1")
        A("s_cmp_eq_u32 s30, 1")
        A("s_cselect_b32 s28, s31, s28")
        if self.allN: A("s_mov_b32 s28, 1")
        A(f"s_sub_u32 s89, s2, {self.OWN0}")
        A(f"s_mov_b32 s60, {hex(f2u(CEXP))}")
        if self.stamps or self.dbgst:
            A("v_mov_b32 v127, 0")
        A("s_waitcnt lgkmcnt(0)")
        A(f"s_load_dword s35, s[58:59], {EP_OFF}")
        A("s_lshl_b32 s30, s4, 25")
        A("s_add_u32 s8, s38, s30")
        A("s_addc_u32 s9, s39, 0")
        A("s_and_b32 s9, s9, 0xffff")
        A("s_mov_b32 s10, 0x2000000")
        A("s_mov_b32 s11, 0x00020000")
        A("s_add_u32 s12, s40, s30")
        A("s_addc_u32 s13, s41, 0")
        A("s_and_b32 s13, s13, 0xffff")
        A("s_mov_b32 s14, 0x2000000")
        A("s_mov_b32 s15, 0x00020000")
        self.srd(16, 58, WS_SIZE)
        A(f"s_cmp_eq_u32 s3, {NWK}")
        A("s_cbranch_scc1 L_control")
        self.worker()
        self.ffn_wave()
        self.control()
        self.label("L_end")
        A("s_endpgm")
        L.append('.section .rodata,"a"')
        L.append(".p2align 6")
        L.append(f".amdhsa_kernel {NAME}_kernel")
        L.append("  .amdhsa_next_free_vgpr 256")
        L.append("  .amdhsa_next_free_sgpr 100")
        L.append("  .amdhsa_accum_offset 256")
        L.append("  .amdhsa_group_segment_fixed_size 0")
        L.append("  .amdhsa_kernarg_size 96")
        L.append("  .amdhsa_user_sgpr_count 2")
        L.append("  .amdhsa_user_sgpr_kernarg_segment_ptr 1")
        L.append("  .amdhsa_system_sgpr_workgroup_id_x 1")
        L.append(".end_amdhsa_kernel")
        return "\n".join(L) + "\n"

if __name__ == "__main__":
    out = sys.argv[1]
    kw = json.loads(sys.argv[2]) if len(sys.argv) > 2 else {}
    open(out, "w").write(Gen(**kw).build())
```

```python
import sys, json, struct
NAME = "parallel_sum__gqa_block_cached__glu_gated_reglu__decode"
HEADER = open("cdna_kernels/%s.s.ref" % NAME).read().split("; Override launch geometry")[0]

NWG = 256
NWK = 7
NW = NWK + 1
EP_OFF = 0x0
Q_OFF = 0x1000
CTR_OFF = 0x8000
REC_OFF = 0x10000
REC_STRIDE = 8192
YP_OFF = 0x210000
YP_STRIDE = 3584
ST_OFF = 0x380000
WS_SIZE = 0x800000
L_CNT = 0
L_QF = 4
L_TBL = 64
TBL_KB = 14
L_XD = L_TBL + TBL_KB * 1024 + 192
L_Q = L_XD + 1792
L_HD = L_Q + 1024
L_P = L_HD + 256
L_M = L_P + 8192
L_R = L_M + NWK * 2304
L_FX = L_R + 64
LDS_SIZE = L_FX + 64
CEXP = 0.09016844005556021
def f2u(f): return struct.unpack("<I", struct.pack("<f", f))[0]

NSTAT = 3
SPR = 4 * NWK * NSTAT
BT = 4
TAG = "s34"

class Gen:
    def __init__(self, RS=1, stamps=False, lead=1, Q=1, sleep=1, PF=1, ND=4, PF0=2, noq=False, nocomp=False, allN=False, nowo=False, direct=False, warm=False, dbgst=False, B=4, ackst=False, X=0, LVL=3, LVLE=3, pipe=False, sleep0=0, sleep2=1, RX=448, latewo=True, masked=True, OWN0=0, noffnpart=False, NE=4, STR=2048, pairg=True):
        self.L = []
        self.pairg = pairg; self.STR = STR; self.NE = NE; self.noffnpart = noffnpart; self.OWN0 = OWN0; self.masked = masked; self.latewo = latewo; self.RX = RX; self.pipe = pipe; self.sleep0 = sleep0; self.sleep2 = sleep2; self.X = X; self.LVL = LVL; self.LVLE = LVLE; self.ackst = ackst; self.B = B; self.LB = B.bit_length() - 1; self.dbgst = dbgst; self.warm = warm; self.direct = direct; self.allN = allN; self.nowo = nowo; self.noq = noq; self.nocomp = nocomp; self.PF = PF; self.ND = ND; self.PF0 = PF0; self.RS = RS; self.stamps = stamps; self.lead = lead; self.Q = Q; self.sleep = sleep
        self.uid = 0
    def A(self, s): self.L.append("  " + s)
    def C(self, s): self.L.append("  ; " + s)
    def label(self, s): self.L.append(s + ":")
    def nop(self, n):
        while n > 0:
            k = min(n, 16); self.A(f"s_nop {k-1}"); n -= k
    def setexec(self, m):
        if m == -1 or 0 <= m <= 64:
            self.A(f"s_mov_b64 exec, {m}")
        else:
            self.A(f"s_mov_b32 exec_lo, {hex(m & 0xffffffff)}")
            self.A(f"s_mov_b32 exec_hi, {hex(m >> 32)}")
    def new(self, p):
        self.uid += 1
        return f"L_{p}_{self.uid}"
    def stamp(self, k):
        A = self.A
        if not (self.stamps or self.dbgst): return
        A("s_memrealtime s[90:91]")
        A("s_waitcnt lgkmcnt(0)")
        A(f"v_writelane_b32 v127, s90, {2*k}")
        A(f"v_writelane_b32 v127, s91, {2*k+1}")
    def dbg_dump(self):
        A = self.A
        self.srd(84, 56, 256)
        A("s_mov_b64 exec, 1")
        for k, m in {0: (0, 1), 3: (None, 2), 5: (3, 4), 6: (10, 5), 7: (None, 6), 8: (None, 7), 9: (None, 8), 10: (None, 9), 4: (None, 11), 2: (None, 12)}.items():
            A(f"v_readlane_b32 s90, v127, {2*k}")
            A("s_nop 3")
            if m[0] is not None:
                A("s_not_b32 s91, s90")
                A("v_mov_b32 v122, s91")
                A(f"v_mov_b32 v123, {4*m[0]}")
                A("buffer_atomic_umax v122, v123, s[84:87], 0 offen sc1")
                A("s_nop 2")
            A("v_mov_b32 v124, s90")
            A(f"v_mov_b32 v125, {4*m[1]}")
            A("buffer_atomic_umax v124, v125, s[84:87], 0 offen sc1")
            A("s_nop 2")
        A("s_mov_b64 exec, -1")
    def allreduce(self, op, v, tmp, steps=("q1", "q2", "hm", "rm", "p16", "p32")):
        A = self.A
        for st in steps:
            if st in ("q1", "q2", "hm", "rm", "ror4", "ror8"):
                mod = {"q1": "quad_perm:[1,0,3,2]", "q2": "quad_perm:[2,3,0,1]", "hm": "row_half_mirror", "rm": "row_mirror",
                       "ror4": "row_ror:4", "ror8": "row_ror:8"}[st]
                self.nop(2)
                A(f"v_{op}_f32_dpp {v}, {v}, {v} {mod} row_mask:0xf bank_mask:0xf")
            else:
                A(f"v_mov_b32 {tmp}, {v}")
                self.nop(2)
                A(f"v_permlane{'16' if st == 'p16' else '32'}_swap_b32 {tmp}, {v}")
                self.nop(1)
                A(f"v_{op}_f32 {v}, {tmp}, {v}")
    def allreduce_multi(self, op, vs, tmps, steps):
        A = self.A
        n = len(vs)
        assert n >= 3
        self.nop(2)
        for st in steps:
            if st in ("q1", "q2", "hm", "rm", "ror4", "ror8"):
                mod = {"q1": "quad_perm:[1,0,3,2]", "q2": "quad_perm:[2,3,0,1]", "hm": "row_half_mirror", "rm": "row_mirror",
                       "ror4": "row_ror:4", "ror8": "row_ror:8"}[st]
                for v in vs:
                    A(f"v_{op}_f32_dpp {v}, {v}, {v} {mod} row_mask:0xf bank_mask:0xf")
            else:
                for v, t in zip(vs, tmps): A(f"v_mov_b32 {t}, {v}")
                self.nop(2)
                for v, t in zip(vs, tmps): A(f"v_permlane{'16' if st == 'p16' else '32'}_swap_b32 {t}, {v}")
                self.nop(1)
                for v, t in zip(vs, tmps): A(f"v_{op}_f32 {v}, {t}, {v}")
    def srd(self, s, ptr, size):
        A = self.A
        A(f"s_mov_b32 s{s}, s{ptr}")
        A(f"s_and_b32 s{s+1}, s{ptr+1}, 0xffff")
        A(f"s_mov_b32 s{s+2}, {size}")
        A(f"s_mov_b32 s{s+3}, 0x00020000")
    def bf16r(self, v):
        self.A(f"v_cvt_pk_bf16_f32 {v}, {v}, {v}")
        self.A(f"v_and_b32 {v}, 0xffff0000, {v}")

    BUF = {0: 64, 1: 128, 2: 192}
    KOFF = [(c >> 1) * 2048 + (c & 1) * 256 for c in range(8)]
    def tile_addr(self, treg):
        A = self.A
        STR = self.STR
        J = STR // 2048
        LJ = J.bit_length() - 1
        A(f"s_lshr_b32 s72, {treg}, {LJ}")
        A(f"s_mul_i32 s72, s72, {4*STR}")
        A(f"s_and_b32 s73, {treg}, {J-1}")
        A("s_lshl_b32 s73, s73, 11")
        A("s_add_u32 s72, s72, s73")
        for r in range(1, 4):
            A(f"s_add_u32 s{72+r}, s72, {r*STR}")
    def ld_tile(self, kind, buf, sreg=None):
        b = self.BUF[buf] + (0 if kind == "K" else 32)
        v = "v4" if kind == "K" else "v6"
        srd = "s[8:11]" if kind == "K" else "s[12:15]"
        for c in range(8):
            r, u = c >> 1, c & 1
            self.A(f"buffer_load_dwordx4 v[{b+4*c}:{b+4*c+3}], {v}, {srd}, s{72+r} offen offset:{u*256} nt")
    def qk(self, buf):
        b = self.BUF[buf]
        for u in range(2):
            for r in range(4):
                c = 2 * r + u
                src = "0" if u == 0 else f"v[{32+4*r}:{35+4*r}]"
                self.A(f"v_mfma_f32_16x16x32_bf16 v[{32+4*r}:{35+4*r}], v[{b+4*c}:{b+4*c+3}], v[{12+4*u}:{15+4*u}], {src}")
    def softmax(self, rare_blocks):
        A = self.A
        if self.nocomp: return
        for r in range(4):
            A(f"v_mov_b32_dpp v{48+r}, v{32+4*r} quad_perm:[0,0,0,0] row_mask:0xf bank_mask:0xf")
        for k in range(1, 4):
            for r in range(4):
                A(f"v_add_f32_dpp v{48+r}, v{32+4*r+k}, v{48+r} quad_perm:[{k},{k},{k},{k}] row_mask:0xf bank_mask:0xf")
        A("v_cvt_pk_bf16_f32 v52, v48, v49")
        A("v_cvt_pk_bf16_f32 v53, v50, v51")
        A("v_lshlrev_b32 v48, 16, v52")
        A("v_and_b32 v49, 0xffff0000, v52")
        A("v_lshlrev_b32 v50, 16, v53")
        A("v_and_b32 v51, 0xffff0000, v53")
        A("v_max3_f32 v52, v48, v49, v50")
        A("v_max_f32 v52, v52, v51")
        A("v_cmp_gt_f32 vcc, v52, v28")
        rare = self.new("rare"); back = self.new("back")
        self.nop(1)
        A(f"s_cbranch_vccnz {rare}")
        self.label(back)
        for r in range(4):
            A(f"v_fma_f32 v{52+r}, v{48+r}, s60, -v29")
        for r in range(4):
            A(f"v_exp_f32 v{52+r}, v{52+r}")
        A("s_nop 0")
        for r in range(4):
            A(f"v_cvt_pk_bf16_f32 v{56+r}, v{52+r}, v{52+r}")
        A("v_add_f32 v52, v52, v53")
        A("v_add_f32 v54, v54, v55")
        A("v_add_f32 v30, v30, v52")
        A("v_add_f32 v30, v30, v54")
        rare_blocks.append((rare, back))
    def rare_block(self, rare, back):
        A = self.A
        self.label(rare)
        self.allreduce("max", "v52", "v53", steps=("p16", "p32"))
        A("v_max_f32 v52, v52, v28")
        A("v_sub_f32 v53, v28, v52")
        A("v_mul_f32 v53, s60, v53")
        A("v_exp_f32 v53, v53")
        A("v_mov_b32 v28, v52")
        A("v_mul_f32 v29, s60, v52")
        A("v_mul_f32 v30, v30, v53")
        A("v_readlane_b32 s62, v53, 0")
        A("v_readlane_b32 s63, v53, 8")
        self.nop(2)
        A("v_mov_b32 v54, s63")
        A("v_mov_b32 v55, s62")
        A("v_cndmask_b32 v54, v54, v55, s[64:65]")
        self.nop(3)
        for k in range(8):
            A(f"v_mul_f32 v{20+k}, v{20+k}, v54")
        self.nop(2)
        A(f"s_branch {back}")
    def pv(self, buf):
        A = self.A
        b = self.BUF[buf] + 32
        for r in range(4):
            a = 32 + 4 * (r & 1)
            for k in range(4):
                A(f"v_and_b32 v{a+k}, v{8+k}, v{56+r}")
            self.nop(2)
            for u in range(2):
                c = 2 * r + u
                A(f"v_mfma_f32_16x16x32_bf16 v[{20+4*u}:{23+4*u}], v[{a}:{a+3}], v[{b+4*c}:{b+4*c+3}], v[{20+4*u}:{23+4*u}]")
        self.wstamp()
    def wstamp(self):
        if not self.stamps: return
        A = self.A
        A("s_memrealtime s[90:91]")
        A("s_waitcnt lgkmcnt(0)")
        A("s_mov_b32 m0, s94")
        A("s_nop 0")
        A("v_writelane_b32 v63, s90, m0")
        A("v_writelane_b32 v1, s95, m0")
        A("s_mov_b32 s95, s69")
        A("s_add_u32 s94, s94, 1")
    def pop_issue(self):
        self.setexec(1)
        self.A("ds_add_rtn_u32 v31, v60, v61")
        self.setexec(-1)
    def pop_resolve(self, endlabel):
        A = self.A
        A("s_waitcnt lgkmcnt(0)")
        self.setexec(1)
        A("v_lshlrev_b32 v62, 2, v31")
        spin = self.new("spin")
        self.label(spin)
        A(f"ds_read_b32 v31, v62 offset:{L_TBL}")
        A("s_waitcnt lgkmcnt(0)")
        A("v_readfirstlane_b32 s66, v31")
        self.nop(2)
        A("s_cmp_eq_u32 s66, -1")
        A(f"s_cbranch_scc1 {spin}")
        self.setexec(-1)
        A("s_cmp_ge_u32 s66, 4096")
        A(f"s_cbranch_scc1 {endlabel}")
        self.tile_addr("s66")
        if self.stamps: A("s_lshl_b32 s69, s66, 13")
    def gemv_strip(self, breg, acc, nt=14):
        A = self.A
        for t in range(nt):
            a = 48 + 4 * (t & 1)
            for k in range(4):
                A(f"v_and_b32 v{a+k}, v{8+k}, v{32+t}")
            self.nop(2)
            src = "0" if t == 0 else f"v[{acc}:{acc+3}]"
            A(f"v_mfma_f32_16x16x32_bf16 v[{acc}:{acc+3}], v[{a}:{a+3}], v[{breg+4*t}:{breg+4*t+3}], {src}")
    def masks(self):
        A = self.A
        A("v_and_b32 v1, 1, v0")
        A("v_lshlrev_b32 v1, 4, v1")
        A("v_mov_b32 v31, 0xffff")
        A("v_lshlrev_b32 v31, v1, v31")
        A("v_bfe_u32 v1, v0, 1, 2")
        for k in range(4):
            A(f"v_cmp_eq_u32 vcc, {k}, v1")
            self.nop(2)
            A(f"v_cndmask_b32 v{8+k}, 0, v31, vcc")
    def get_tag(self):
        self.A("s_waitcnt lgkmcnt(0)")
        self.A(f"s_add_u32 {TAG}, s35, 1")

    def ln(self):
        A = self.A
        for k in range(4):
            A(f"v_lshlrev_b32 v{12+2*k}, 16, v{8+k}")
            A(f"v_and_b32 v{13+2*k}, 0xffff0000, v{8+k}")
        A("v_add_f32 v20, v12, v13")
        for k in range(2, 8):
            A(f"v_add_f32 v20, v20, v{12+k}")
        self.allreduce("add", "v20", "v21")
        A(f"v_mul_f32 v20, {hex(f2u(1.0/448.0))}, v20")
        A("v_cmp_gt_u32 vcc, 56, v0")
        A("v_mov_b32 v22, 0")
        for k in range(8):
            A(f"v_sub_f32 v23, v{12+k}, v20")
            A("v_fmac_f32 v22, v23, v23")
        A("v_cndmask_b32 v22, 0, v22, vcc")
        self.allreduce("add", "v22", "v21")
        A(f"v_mul_f32 v22, {hex(f2u(1.0/448.0))}, v22")
        self.bf16r("v22")
        self.bf16r("v20")
        A(f"v_add_f32 v22, {hex(f2u(1e-5))}, v22")
        self.bf16r("v22")
        A("v_sqrt_f32 v22, v22")
        A("s_nop 0")
        self.bf16r("v22")
        A("v_rcp_f32 v23, v22")
        A("s_nop 0")
        for k in range(8):
            A(f"v_sub_f32 v{12+k}, v{12+k}, v20")
            self.bf16r(f"v{12+k}")
            A(f"v_mul_f32 v24, v{12+k}, v23")
            A(f"v_fma_f32 v25, -v24, v22, v{12+k}")
            A(f"v_fma_f32 v24, v25, v23, v24")
            A(f"v_cvt_pk_bf16_f32 v{12+k}, v24, v24")
        A("v_lshlrev_b32 v26, 5, v0")
        self.setexec(0x00ffffffffffffff)
        A(f"ds_write_b128 v26, v[12:15] offset:{L_XD}")
        A(f"ds_write_b128 v26, v[16:19] offset:{L_XD+16}")
        self.setexec(-1)
        A("s_waitcnt lgkmcnt(0)")

    def fstamp(self, k):
        if not self.stamps: return
        A = self.A
        A("s_memrealtime s[90:91]")
        A("s_waitcnt lgkmcnt(0)")
        A(f"v_writelane_b32 v29, s90, {k}")
    def ffn_wave(self):
        A = self.A; C = self.C
        C("FFN strip by one wave: gate/up (64 columns), h, down projection")
        self.label("L_ffn")
        self.srd(20, 36, 896)
        A("v_lshlrev_b32 v1, 4, v0")
        A("buffer_load_dwordx4 v[8:11], v1, s[20:23], 0 offen nt")
        self.srd(20, 48, 448 * 3584)
        self.srd(24, 50, 448 * 3584)
        A("v_lshrrev_b32 v2, 3, v0")
        A("s_mov_b32 s30, 3584")
        A("v_mul_lo_u32 v2, v2, s30")
        A("v_and_b32 v1, 7, v0")
        A("v_lshl_add_u32 v2, v1, 4, v2")
        A("s_lshl_b32 s30, s33, 7")
        GB = [64, 120, 176]
        chunks = [(m, q) for m in range(2) for q in range(4)]
        def issue(n):
            m, q = chunks[n]
            b = GB[n % 3]
            srd = "s[20:23]" if m == 0 else "s[24:27]"
            for t in range(14):
                A(f"s_add_u32 s31, s30, {(q*112 + t*8)*3584}")
                A(f"buffer_load_dwordx4 v[{b+4*t}:{b+4*t+3}], v2, {srd}, s31 offen nt")
        for n in range(3): issue(n)
        A("s_barrier")
        self.get_tag()
        if self.stamps: A("v_mov_b32 v29, 0")
        self.fstamp(0)
        A("s_waitcnt vmcnt(42)")
        self.fstamp(1)
        self.ln()
        self.fstamp(2)
        self.masks()
        A("v_lshrrev_b32 v3, 3, v0")
        A("v_lshlrev_b32 v3, 2, v3")
        for n in range(8):
            m, q = chunks[n]
            for t in range(14):
                A(f"ds_read_b32 v{32+t}, v3 offset:{L_XD + q*448 + t*32}")
            inflight = min(8, n + 3) - (n + 1)
            A(f"s_waitcnt vmcnt({14*inflight}) lgkmcnt(0)")
            acc = 56 if m == 0 else 60
            b = GB[n % 3]
            for t in range(14):
                a = 48 + 4 * (t & 1)
                for k in range(4):
                    A(f"v_and_b32 v{a+k}, v{8+k}, v{32+t}")
                self.nop(2)
                src = "0" if (t == 0 and q == 0) else f"v[{acc}:{acc+3}]"
                A(f"v_mfma_f32_16x16x32_bf16 v[{acc}:{acc+3}], v[{a}:{a+3}], v[{b+4*t}:{b+4*t+3}], {src}")
            if n + 3 < 8: issue(n + 3)
            self.fstamp(3 + n)
        self.srd(20, 52, 1792 * 896)
        A("v_and_b32 v4, 15, v0")
        A("v_lshrrev_b32 v5, 4, v0")
        A("v_mul_u32_u24 v6, 896, v5")
        A("v_lshl_add_u32 v6, v4, 4, v6")
        A("s_lshl_b32 s30, s33, 6")
        A("s_mul_i32 s30, s30, 896")
        DB = [64, 128, 192]
        def issue_d(n):
            b = DB[n % 3]
            for tt in range(4):
                A(f"s_add_u32 s31, s30, {(n*4+tt)*4*896}")
                for cb in range(4):
                    r = b + (tt * 4 + cb) * 4
                    A(f"buffer_load_dwordx4 v[{r}:{r+3}], v6, s[20:23], s31 offen offset:{cb*256} nt")
        for n in range(3): issue_d(n)
        A("v_lshlrev_b32 v7, 4, v0")
        self.nop(4)
        A(f"ds_write_b128 v7, v[56:59] offset:{L_P}")
        A(f"ds_write_b128 v7, v[60:63] offset:{L_P+1024}")
        A("v_and_b32 v2, 7, v0")
        A("v_bfe_u32 v3, v0, 3, 1")
        A("v_lshl_add_u32 v7, v3, 4, v2")
        A("v_lshlrev_b32 v7, 4, v7")
        A("s_waitcnt lgkmcnt(0)")
        A(f"ds_read_b128 v[32:35], v7 offset:{L_P}")
        A(f"ds_read_b128 v[36:39], v7 offset:{L_P+640}")
        A(f"ds_read_b128 v[40:43], v7 offset:{L_P+1024}")
        A(f"ds_read_b128 v[44:47], v7 offset:{L_P+1024+640}")
        A("s_waitcnt lgkmcnt(0)")
        for k in range(4):
            A(f"v_add_f32 v{32+k}, v{32+k}, v{36+k}")
            A(f"v_add_f32 v{40+k}, v{40+k}, v{44+k}")
            self.bf16r(f"v{32+k}")
            self.bf16r(f"v{40+k}")
            A(f"v_max_f32 v{32+k}, 0, v{32+k}")
            A(f"v_mul_f32 v{32+k}, v{32+k}, v{40+k}")
            A(f"v_cvt_pk_bf16_f32 v{32+k}, v{32+k}, v{32+k}")
        A("v_lshlrev_b32 v2, 5, v2")
        A("v_lshl_add_u32 v2, v3, 4, v2")
        self.setexec(0xffff)
        A(f"ds_write_b128 v2, v[32:35] offset:{L_HD}")
        self.setexec(-1)
        A("s_waitcnt lgkmcnt(0)")
        A("v_lshlrev_b32 v3, 2, v5")
        for t in range(16):
            A(f"ds_read_b32 v{12+t}, v3 offset:{L_HD + t*16}")
        A("s_waitcnt lgkmcnt(0)")
        for n in range(4):
            inflight = min(4, n + 3) - (n + 1)
            A(f"s_waitcnt vmcnt({16*inflight})")
            b = DB[n % 3]
            for tt in range(4):
                t = n * 4 + tt
                a = 48 + 4 * (t & 1)
                for k in range(4):
                    A(f"v_and_b32 v{a+k}, v{8+k}, v{12+t}")
                self.nop(2)
                for cb in range(4):
                    r = b + (tt * 4 + cb) * 4
                    src = "0" if t == 0 else f"v[{32+4*cb}:{35+4*cb}]"
                    A(f"v_mfma_f32_16x16x32_bf16 v[{32+4*cb}:{35+4*cb}], v[{a}:{a+3}], v[{r}:{r+3}], {src}")
            if n + 3 < 4: issue_d(n + 3)
            self.fstamp(12 + n)
        for cb in range(4):
            A(f"v_mov_b32 v{65+4*cb}, {TAG}"); A(f"v_mov_b32 v{67+4*cb}, {TAG}")
        A("v_cmp_lt_u32 s[78:79], 31, v0")
        A("v_lshlrev_b32 v6, 6, v4")
        A("v_and_b32 v7, 1, v5")
        A("v_lshl_add_u32 v6, v7, 5, v6")
        A("v_lshrrev_b32 v7, 1, v5")
        A("v_lshl_add_u32 v6, v7, 4, v6")
        A("s_add_u32 s31, s33, 256")
        A(f"s_mul_i32 s31, s31, {YP_STRIDE}")
        A(f"s_add_u32 s31, s31, {YP_OFF}")
        self.nop(2)
        for cb in range(4):
            A(f"v_cndmask_b32 v{64+4*cb}, v{32+4*cb}, v{34+4*cb}, s[78:79]")
            A(f"v_cndmask_b32 v{66+4*cb}, v{33+4*cb}, v{35+4*cb}, s[78:79]")
            if cb == 3: self.setexec(0x00ff00ff00ff00ff)
            A(f"buffer_store_dwordx4 v[{64+4*cb}:{67+4*cb}], v6, s[16:19], s31 offen offset:{cb*1024} sc1")
        self.setexec(-1)
        A("s_waitcnt vmcnt(0)")
        if self.stamps:
            self.fstamp(16)
            A("v_lshlrev_b32 v6, 2, v0")
            A("s_lshl_b32 s31, s33, 8")
            A(f"s_add_u32 s31, s31, {ST_OFF + 0x120000}")
            A("buffer_store_dword v29, v6, s[16:19], s31 offen")
            A("s_waitcnt vmcnt(0)")
        A("s_mov_b32 s32, 2")
        A("s_branch L_prefetch")

    def worker(self):
        A = self.A; C = self.C
        self.label("L_worker")
        A("s_cmp_eq_u32 s28, 2")
        w0 = self.new("w")
        A(f"s_cbranch_scc0 {w0}")
        A(f"s_cmp_eq_u32 s3, {NWK-1}")
        A("s_cbranch_scc1 L_ffn")
        self.label(w0)
        A("s_cmp_eq_u32 s28, 0")
        A("s_cbranch_scc1 L_wroleQ")
        A("s_mov_b32 s32, 1")
        A("s_branch L_prefetch")

        C("role Q: q strip producer (64 rows per wave)")
        self.label("L_wroleQ")
        self.srd(20, 42, 448 * 8192)
        A("v_lshrrev_b32 v62, 3, v0")
        A("v_lshlrev_b32 v62, 13, v62")
        A("v_and_b32 v1, 7, v0")
        A("v_lshl_add_u32 v62, v1, 4, v62")
        A(f"s_lshl_b32 s30, s3, 19")
        A("s_lshl_b32 s31, s29, 7")
        A("s_add_u32 s30, s30, s31")
        for t in range(8):
            A(f"s_add_u32 s31, s30, {t*8*8192}")
            A(f"buffer_load_dwordx4 v[{192+4*t}:{195+4*t}], v62, s[20:23], s31 offen nt")
        self.masks()
        A("s_barrier")
        A("v_lshrrev_b32 v63, 3, v0")
        A("v_lshlrev_b32 v63, 2, v63")
        A(f"s_lshl_b32 s31, s3, 8")
        A(f"s_add_u32 s31, s31, {L_XD}")
        A("v_add_u32 v63, s31, v63")
        A("s_barrier")
        for t in range(8):
            A(f"ds_read_b32 v{32+t}, v63 offset:{t*32}")
        A("s_waitcnt vmcnt(0) lgkmcnt(0)")
        self.gemv_strip(192, 56, nt=8)
        A("v_lshlrev_b32 v62, 4, v0")
        A("s_lshl_b32 s31, s3, 10")
        A(f"s_add_u32 s31, s31, {L_P}")
        A("v_add_u32 v62, s31, v62")
        self.nop(8)
        A("ds_write_b128 v62, v[56:59]")
        A("s_waitcnt lgkmcnt(0)")
        A("s_barrier")
        A("s_barrier")
        self.label("L_prefetch0")
        A("s_mov_b32 s32, 0")

        C("staggered prefetch of the 3 static items")
        self.label("L_prefetch")
        A("v_and_b32 v2, 15, v0")
        A("v_lshrrev_b32 v3, 4, v0")
        A("v_lshrrev_b32 v4, 2, v2")
        A("v_lshlrev_b32 v4, 9, v4")
        A("v_lshl_add_u32 v4, v3, 6, v4")
        A("v_and_b32 v1, 3, v2")
        A("v_lshl_add_u32 v4, v1, 4, v4")
        A("v_lshlrev_b32 v6, 9, v3")
        A("v_lshl_add_u32 v6, v2, 4, v6")
        A(f"s_mul_i32 s61, s6, {self.RX}")
        A(f"s_mul_i32 s30, s7, {NWK}")
        A("s_add_u32 s61, s61, s30")
        A("s_add_u32 s61, s61, s3")
        A(f"s_add_u32 s70, s61, {4*NWK}")
        A(f"s_add_u32 s71, s61, {8*NWK}")
        seq = [("K", 0, "s61"), ("V", 0, "s61"), ("K", 1, "s70"), ("V", 1, "s70"), ("K", 2, "s71"), ("V", 2, "s71")]
        def pf(n):
            kind, buf, t = seq[n]
            if kind == "K": self.tile_addr(t)
            self.ld_tile(kind, buf)
        first = self.PF0
        for n in range(first): pf(n)
        A("s_cmp_lg_u32 s32, 1")
        w1 = self.new("w")
        A(f"s_cbranch_scc1 {w1}")
        A("s_barrier")
        self.label(w1)
        self.masks()
        self.get_tag()
        A("s_cmp_eq_u32 s32, 2")
        A("s_cbranch_scc1 L_burst")
        for n in range(first, 6):
            A(f"s_waitcnt vmcnt({8*(self.PF-1)})")
            pf(n)
        A("s_branch L_pfdone")
        self.label("L_burst")
        for n in range(first, 6):
            pf(n)
        A(f"s_waitcnt vmcnt({8*self.PF})")
        self.label("L_pfdone")
        self.Qinit = [("K", 2, 2), ("V", 2, 2)][2 - self.PF:]
        A(f"v_mov_b32 v62, {L_QF}")
        sq = self.new("spinq")
        self.label(sq)
        A("ds_read_b32 v31, v62")
        A("s_waitcnt lgkmcnt(0)")
        A("v_readfirstlane_b32 s66, v31")
        self.nop(2)
        A("s_cmp_lg_u32 s66, 0")
        sqd = self.new("spinqd")
        A(f"s_cbranch_scc1 {sqd}")
        A("s_sleep 1")
        A(f"s_branch {sq}")
        self.label(sqd)
        A("v_lshrrev_b32 v62, 3, v2")
        A("v_lshlrev_b32 v62, 9, v62")
        A("v_lshl_add_u32 v62, v3, 6, v62")
        A("v_and_b32 v1, 3, v2")
        A("v_lshl_add_u32 v62, v1, 4, v62")
        A(f"ds_read_b128 v[12:15], v62 offset:{L_Q}")
        A(f"ds_read_b128 v[16:19], v62 offset:{L_Q+256}")
        for k in range(8):
            A(f"v_mov_b32 v{20+k}, 0")
        A("v_mov_b32 v28, 0xff800000")
        A("v_mov_b32 v29, 0xff800000")
        A("v_mov_b32 v30, 0")
        A(f"v_mov_b32 v60, {L_CNT}")
        A("v_mov_b32 v61, 1")
        A("s_mov_b32 s64, -1")
        A("s_mov_b32 s65, 0")
        A("s_waitcnt lgkmcnt(0)")
        if self.stamps:
            A("v_mov_b32 v63, 0")
            A("v_mov_b32 v1, 0")
            A("s_mov_b32 s94, 0")
            A("s_mov_b32 s95, -1")
            A("s_mov_b32 s69, -1")
            self.wstamp()
        rare = []
        drains = []
        Q = list(self.Qinit)
        def wait(kind, item):
            idxs = [i for i, q in enumerate(Q) if q[0] == kind and q[1] == item]
            if not idxs: return
            idx = idxs[0]
            after = len(Q) - idx - 1
            A(f"s_waitcnt vmcnt({8*after})")
            del Q[:idx + 1]
        def process(item, buf, refill, nxt, pending):
            if refill: self.pop_issue()
            wait("K", item)
            self.qk(buf)
            if refill:
                d = self.new("drain")
                drains.append((d, item, buf, list(Q), list(pending)))
                self.pop_resolve(d)
                self.ld_tile("K", buf); Q.append(("K", nxt, buf))
            else:
                self.nop(8)
            self.softmax(rare)
            wait("V", item)
            self.pv(buf)
            if refill:
                self.ld_tile("V", buf); Q.append(("V", nxt, buf))
        RS = self.RS
        if self.ND < NWK:
            A(f"s_cmp_ge_u32 s3, {self.ND}")
            A("s_cbranch_scc1 L_static_only")
        if self.direct:
            assert RS == 3
            Q0 = [("K", 0, 0), ("V", 0, 0), ("K", 1, 1), ("V", 1, 1), ("K", 2, 2), ("V", 2, 2)]
        else:
            nxt = 3
            pend = [(1, 1), (2, 2)]
            for n in range(3):
                rf = n < RS
                pending = [(it, b) for (it, b) in pend if it > n]
                pending += [(3 + k, k) for k in range(min(n, RS))]
                process(n, n, rf, nxt, pending)
                if rf: nxt += 1
            Q0 = [(k, it - 3, b) for (k, it, b) in Q]
        self.label("L_loop")
        Q[:] = list(Q0)
        for n in range(RS):
            pending = [(m, m) for m in range(n + 1, RS)] + [(RS + k, k) for k in range(n)]
            process(n, n, True, n + RS, pending)
        Q1 = [(k, it - RS, b) for (k, it, b) in Q]
        assert Q1 == Q0, (Q0, Q1)
        A("s_branch L_loop")
        for (d, item, buf, q, pending) in drains:
            self.label(d)
            Q[:] = list(q)
            self.nop(8)
            self.softmax(rare)
            wait("V", item)
            self.pv(buf)
            for (it, b) in pending:
                wait("K", it)
                self.qk(b)
                self.nop(8)
                self.softmax(rare)
                wait("V", it)
                self.pv(b)
            assert not Q, Q
            A("s_branch L_wfin")
        if self.ND < NWK:
            self.label("L_static_only")
            Q[:] = list(self.Qinit)
            for n in range(3):
                process(n, n, False, None, [])
            A("s_branch L_wfin")
        for (r, b) in rare:
            self.rare_block(r, b)
        self.label("L_wfin")
        if self.stamps:
            A("v_lshlrev_b32 v62, 2, v0")
            A("s_lshl_b32 s31, s2, 3")
            A("s_add_u32 s31, s31, s3")
            A("s_lshl_b32 s31, s31, 8")
            A(f"s_add_u32 s31, s31, {ST_OFF + 0x10000}")
            A("buffer_store_dword v63, v62, s[16:19], s31 offen")
            A("s_add_u32 s31, s31, 0x80000")
            A("buffer_store_dword v1, v62, s[16:19], s31 offen")
        self.allreduce("add", "v30", "v31", steps=("p16", "p32"))
        A("v_lshrrev_b32 v62, 1, v3")
        A("v_lshlrev_b32 v62, 10, v62")
        A("v_lshl_add_u32 v62, v2, 5, v62")
        A("v_and_b32 v1, 1, v3")
        A("v_lshl_add_u32 v62, v1, 4, v62")
        A(f"s_mul_i32 s31, s3, 2304")
        A(f"s_add_u32 s31, s31, {L_M}")
        A("v_add_u32 v62, s31, v62")
        self.nop(4)
        A("ds_write_b128 v62, v[20:23]")
        A("ds_write_b128 v62, v[24:27] offset:512")
        A("v_lshrrev_b32 v63, 3, v0")
        A("v_lshlrev_b32 v63, 3, v63")
        A("v_add_u32 v63, s31, v63")
        A("v_mov_b32 v29, v30")
        self.setexec(0x101)
        A("ds_write_b64 v63, v[28:29] offset:2048")
        self.setexec(-1)
        A("s_waitcnt lgkmcnt(0)")
        A(f"s_mul_i32 s31, s2, {REC_STRIDE}")
        A(f"s_add_u32 s31, s31, {REC_OFF}")
        A(f"v_mov_b32 v2, {L_M + 2048}")
        A("v_lshlrev_b32 v3, 4, v0")
        A("v_lshlrev_b32 v4, 3, v0")
        A(f"v_mov_b32 v33, {TAG}"); A(f"v_mov_b32 v35, {TAG}")
        A("s_lshl_b32 s30, s3, 9")
        A("v_add_u32 v4, s30, v4")
        A("s_lshl_b32 s30, s3, 10")
        A("s_add_u32 s30, s30, s31")
        A("s_lshr_b32 s66, s3, 1")
        A("s_lshl_b32 s66, s66, 3")
        A("v_add_u32 v5, s66, v2")
        A("v_and_b32 v6, 1, v0")
        A("v_lshlrev_b32 v6, 3, v6")
        A("v_add_u32 v6, v6, v2")
        A("s_barrier")
        A("s_cmp_eq_u32 s3, 5")
        A("s_cbranch_scc1 L_wffn")
        A("s_cmp_gt_u32 s3, 4")
        A("s_cbranch_scc1 L_end")
        A("s_cmp_eq_u32 s3, 4")
        A("s_cbranch_scc1 L_whead")
        C("record quarter k = wave: elements h*256 + half*128 + 2*lane + {0,1}")
        for w in range(NWK):
            A(f"ds_read_b64 v[{64+2*w}:{65+2*w}], v5 offset:{w*2304}")
        for w in range(NWK):
            A(f"ds_read_b64 v[{80+2*w}:{81+2*w}], v4 offset:{L_M + w*2304}")
        A(f"s_waitcnt lgkmcnt({NWK})")
        A("v_max_f32 v36, v64, v66")
        for w in range(2, NWK):
            A(f"v_max_f32 v36, v36, v{64+2*w}")
        for w in range(NWK):
            A(f"v_sub_f32 v{64+2*w}, v{64+2*w}, v36")
        for w in range(NWK):
            A(f"v_mul_f32 v{64+2*w}, s60, v{64+2*w}")
        for w in range(NWK):
            A(f"v_exp_f32 v{64+2*w}, v{64+2*w}")
        A("s_waitcnt lgkmcnt(0)")
        A("v_mul_f32 v32, v64, v80"); A("v_mul_f32 v34, v64, v81")
        for w in range(1, NWK):
            A(f"v_fmac_f32 v32, v{64+2*w}, v{80+2*w}")
            A(f"v_fmac_f32 v34, v{64+2*w}, v{81+2*w}")
        A("buffer_store_dwordx4 v[32:35], v3, s[16:19], s30 offen sc1")
        if self.stamps and self.ackst:
            A("s_memrealtime s[90:91]")
            A("s_waitcnt vmcnt(0)")
            A("s_memrealtime s[92:93]")
            A("s_waitcnt lgkmcnt(0)")
            A("v_mov_b32 v36, s90"); A("v_mov_b32 v37, s92")
            A("s_lshl_b32 s66, s2, 5")
            A("s_lshl_b32 s67, s3, 3")
            A("s_add_u32 s66, s66, s67")
            A(f"s_add_u32 s66, s66, {ST_OFF + 0x110000}")
            A("v_mov_b32 v38, 0")
            self.setexec(1)
            A("buffer_store_dwordx2 v[36:37], v38, s[16:19], s66 offen")
            self.setexec(-1)
        A("s_cmp_ge_u32 s89, 112")
        A("s_cbranch_scc1 L_end")
        A("s_branch L_hop2")
        self.label("L_whead")
        C("header line {M, tag, L, tag} x 2 heads (lane parity = head), written as one full line")
        for w in range(NWK):
            A(f"ds_read_b64 v[{64+2*w}:{65+2*w}], v6 offset:{w*2304}")
        A("s_waitcnt lgkmcnt(0)")
        A("v_max_f32 v32, v64, v66")
        for w in range(2, NWK):
            A(f"v_max_f32 v32, v32, v{64+2*w}")
        for w in range(NWK):
            A(f"v_sub_f32 v{64+2*w}, v{64+2*w}, v32")
        for w in range(NWK):
            A(f"v_mul_f32 v{64+2*w}, s60, v{64+2*w}")
        for w in range(NWK):
            A(f"v_exp_f32 v{64+2*w}, v{64+2*w}")
        A("s_nop 0")
        A("v_mul_f32 v34, v64, v65")
        for w in range(1, NWK):
            A(f"v_fmac_f32 v34, v{64+2*w}, v{65+2*w}")
        A("s_add_u32 s30, s31, 4096")
        self.setexec(0xff)
        A("buffer_store_dwordx4 v[32:35], v3, s[16:19], s30 offen sc1")
        A("s_branch L_end")
        self.label("L_wffn")
        A("s_cmp_ge_u32 s89, 112")
        A("s_cbranch_scc1 L_end")
        self.ffn_part()
        A("s_waitcnt lgkmcnt(0)")
        A("s_barrier")
        A("s_barrier")
        A("s_branch L_end")
        self.label("L_hop2")
        A("s_barrier")
        C("hop 2: thread t = w*64+lane polls ypart[t][4b..4b+3] granules")
        A("s_lshl_b32 s31, s3, 6")
        A("v_add_u32 v1, s31, v0")
        A(f"v_mul_u32_u24 v62, {YP_STRIDE}, v1")
        A("s_lshl_b32 s31, s89, 5")
        A(f"s_add_u32 s31, s31, {YP_OFF}")
        if self.pipe:
            p = self.new("poll2"); g0 = self.new("got0"); g1 = self.new("got1"); cont = self.new("cont2")
            PS = [64, 80]
            def issue(P):
                A(f"buffer_load_dwordx4 v[{P}:{P+3}], v62, s[16:19], s31 offen sc1")
                A(f"buffer_load_dwordx4 v[{P+4}:{P+7}], v62, s[16:19], s31 offen offset:16 sc1")
            issue(PS[0])
            self.label(p)
            for (cur, oth, gl) in ((0, 1, g0), (1, 0, g1)):
                issue(PS[oth])
                A("s_waitcnt vmcnt(2)")
                self.check_tags([f"v{PS[cur]+1+2*k}" for k in range(4)], "v40")
                A(f"s_cbranch_vccz {gl}")
            A(f"s_branch {p}")
            for (cur, gl) in ((1, g1), (0, g0)):
                self.label(gl)
                P = PS[cur]
                for k in range(4):
                    A(f"v_mov_b32 v{32+2*k}, v{P+2*k}")
                if cur == 1: A(f"s_branch {cont}")
            self.label(cont)
        else:
            p = self.new("poll2"); pd = self.new("poll2d")
            self.label(p)
            A("buffer_load_dwordx4 v[32:35], v62, s[16:19], s31 offen sc1")
            A("buffer_load_dwordx4 v[36:39], v62, s[16:19], s31 offen offset:16 sc1")
            A("s_waitcnt vmcnt(0)")
            self.check_tags(["v33", "v35", "v37", "v39"], "v40")
            A(f"s_cbranch_vccz {pd}")
            if self.masked: A("s_mov_b64 exec, vcc")
            if self.sleep2: A(f"s_sleep {self.sleep2}")
            A(f"s_branch {p}")
            self.label(pd)
            self.setexec(-1)
        self.allreduce_multi("add", ["v32", "v34", "v36", "v38"], ["v40", "v41", "v42", "v43"], ("q1", "q2", "hm", "rm", "p16", "p32"))
        A("v_mov_b32 v33, v34"); A("v_mov_b32 v34, v36"); A("v_mov_b32 v35, v38")
        A("s_lshl_b32 s31, s3, 4")
        A(f"s_add_u32 s31, s31, {L_R}")
        A("v_mov_b32 v62, s31")
        self.setexec(1)
        A("ds_write_b128 v62, v[32:35]")
        self.setexec(-1)
        A("s_waitcnt lgkmcnt(0)")
        A("s_barrier")
        A("s_branch L_end")

    def check_tags(self, regs, tmp, tmp2="v63"):
        A = self.A
        A(f"v_xor_b32 {tmp}, {TAG}, {regs[0]}")
        for r in regs[1:]:
            A(f"v_xor_b32 {tmp2}, {TAG}, {r}")
            A(f"v_or_b32 {tmp}, {tmp}, {tmp2}")
        A(f"v_cmp_ne_u32 vcc, 0, {tmp}")
        self.nop(1)

    def ffn_part(self):
        A = self.A
        self.C("FFN part of hop 2 (wg < 112)")
        A(f"v_mul_u32_u24 v64, {YP_STRIDE}, v0")
        A("s_lshl_b32 s31, s89, 5")
        A(f"s_add_u32 s31, s31, {YP_OFF + 256*YP_STRIDE}")
        p = self.new("pollf"); pd = self.new("pollfd")
        self.setexec(0xfffffff)
        self.label(p)
        A("buffer_load_dwordx4 v[68:71], v64, s[16:19], s31 offen sc1")
        A("buffer_load_dwordx4 v[72:75], v64, s[16:19], s31 offen offset:16 sc1")
        A("s_waitcnt vmcnt(0)")
        self.check_tags(["v69", "v71", "v73", "v75"], "v65", tmp2="v66")
        A(f"s_cbranch_vccz {pd}")
        A("s_sleep 8")
        if not self.allN: A(f"s_branch {p}")
        self.label(pd)
        self.setexec(-1)
        A("v_cmp_gt_u32 vcc, 28, v0")
        self.nop(2)
        for k in range(4):
            A(f"v_cndmask_b32 v{68+2*k}, 0, v{68+2*k}, vcc")
        self.srd(20, 36, 896)
        A("s_lshl_b32 s31, s89, 3")
        A("v_mov_b32 v64, 0")
        A("buffer_load_dwordx2 v[80:81], v64, s[20:23], s31 offen nt")
        self.allreduce_multi("add", ["v68", "v70", "v72", "v74"], ["v65", "v66", "v67", "v76"], ("q1", "q2", "hm", "rm", "p16", "p32"))
        for k in range(4):
            self.bf16r(f"v{68+2*k}")
        A("v_mov_b32 v76, v68"); A("v_mov_b32 v77, v70"); A("v_mov_b32 v78, v72"); A("v_mov_b32 v79, v74")
        A(f"v_mov_b32 v64, {L_FX}")
        A("s_waitcnt vmcnt(0)")
        self.setexec(1)
        A("ds_write_b128 v64, v[76:79]")
        A("ds_write_b64 v64, v[80:81] offset:16")
        self.setexec(-1)

    def control(self):
        A = self.A; C = self.C
        self.label("L_control")
        self.stamp(0)
        self.srd(20, 36, 896)
        A("v_lshlrev_b32 v1, 4, v0")
        A("s_cmp_lg_u32 s28, 0")
        x0 = self.new("x")
        A(f"s_cbranch_scc1 {x0}")
        A("buffer_load_dwordx4 v[8:11], v1, s[20:23], 0 offen nt")
        self.label(x0)
        A("v_mov_b32 v4, -1"); A("v_mov_b32 v5, -1"); A("v_mov_b32 v6, -1"); A("v_mov_b32 v7, -1")
        for k in range(TBL_KB):
            A(f"ds_write_b128 v1, v[4:7] offset:{L_TBL + k*1024}")
        A("v_mov_b32 v2, 0")
        A(f"v_mov_b32 v3, {1 if self.noq else 0}")
        A(f"ds_write_b64 v2, v[2:3] offset:{L_CNT}")
        A("s_waitcnt lgkmcnt(0)")
        A("s_barrier")
        self.get_tag()
        A("s_cmp_lg_u32 s28, 0")
        A("s_cbranch_scc1 L_cpollq")
        C("role Q: producer 8g zeroes the ticket counters of head g")
        A("s_and_b32 s30, s29, 7")
        A("s_cmp_lg_u32 s30, 0")
        A("s_cbranch_scc1 L_cln")
        self.setexec(0x1ff)
        A("v_lshlrev_b32 v3, 8, v0")
        A("s_lshl_b32 s30, s29, 9")
        A(f"s_add_u32 s31, s30, {CTR_OFF}")
        A("buffer_store_dword v2, v3, s[16:19], s31 offen sc1")
        self.setexec(-1)
        self.label("L_cln")
        A("s_waitcnt vmcnt(0)")
        self.ln()
        A("s_barrier")
        self.stamp(1)
        A("v_and_b32 v2, 7, v0")
        A("v_bfe_u32 v3, v0, 3, 1")
        A("v_lshl_add_u32 v2, v3, 4, v2")
        A("v_lshlrev_b32 v2, 4, v2")
        A(f"v_mov_b32 v17, {TAG}")
        A(f"v_mov_b32 v19, {TAG}")
        A("v_and_b32 v4, 7, v0")
        A("v_lshlrev_b32 v4, 5, v4")
        A("v_lshl_add_u32 v4, v3, 4, v4")
        A("s_lshl_b32 s31, s29, 8")
        A(f"s_add_u32 s31, s31, {Q_OFF}")
        A("s_barrier")
        for w in range(NWK):
            A(f"ds_read_b128 v[{32+8*w}:{35+8*w}], v2 offset:{L_P + w*1024}")
            A(f"ds_read_b128 v[{36+8*w}:{39+8*w}], v2 offset:{L_P + w*1024 + 640}")
        A("s_waitcnt lgkmcnt(0)")
        for k in range(4):
            A(f"v_add_f32 v{12+k}, v{32+k}, v{36+k}")
        for w in range(1, NWK):
            for k in range(4):
                A(f"v_add_f32 v{32+8*w+k}, v{32+8*w+k}, v{36+8*w+k}")
            for k in range(4):
                A(f"v_add_f32 v{12+k}, v{12+k}, v{32+8*w+k}")
        A("v_cvt_pk_bf16_f32 v16, v12, v13")
        A("v_cvt_pk_bf16_f32 v18, v14, v15")
        self.setexec(0xffff)
        A("buffer_store_dwordx4 v[16:19], v4, s[16:19], s31 offen sc1")
        self.setexec(-1)
        A("s_barrier")
        self.stamp(2)
        C("poll q granules of this head group")
        self.label("L_cpollq")
        A("v_lshlrev_b32 v2, 4, v0")
        A("s_lshl_b32 s31, s4, 11")
        A(f"s_add_u32 s31, s31, {Q_OFF}")
        p = self.new("pollq"); pd = self.new("pollqd")
        self.label(p)
        A("buffer_load_dwordx4 v[4:7], v2, s[16:19], s31 offen sc1")
        A("buffer_load_dwordx4 v[8:11], v2, s[16:19], s31 offen offset:1024 sc1")
        A("s_waitcnt vmcnt(0)")
        self.check_tags(["v5", "v7", "v9", "v11"], "v12")
        A(f"s_cbranch_vccz {pd}")
        if not self.allN: A(f"s_branch {p}")
        self.label(pd)
        self.stamp(3)
        A("v_mov_b32 v5, v6")
        A("v_mov_b32 v9, v10")
        A("v_lshlrev_b32 v3, 3, v0")
        A(f"ds_write_b64 v3, v[4:5] offset:{L_Q}")
        A(f"ds_write_b64 v3, v[8:9] offset:{L_Q+512}")
        A("v_mov_b32 v4, 1")
        A(f"v_mov_b32 v5, {L_QF}")
        A("s_waitcnt lgkmcnt(0)")
        A("ds_write_b32 v5, v4")
        self.stamp(4)
        if self.warm == 2:
            C("touch this workgroup's hand-off lines early with loads")
            A("v_lshlrev_b32 v2, 4, v0")
            A(f"s_mul_i32 s31, s2, {REC_STRIDE}")
            A(f"s_add_u32 s31, s31, {REC_OFF}")
            for k in range(4):
                A(f"buffer_load_dwordx4 v[{192+4*k}:{195+4*k}], v2, s[16:19], s31 offen offset:{k*1024} sc1")
            A("s_add_u32 s31, s31, 4096")
            self.setexec(0xff)
            A("buffer_load_dwordx4 v[208:211], v2, s[16:19], s31 offen sc1")
            self.setexec(-1)
            A(f"s_mul_i32 s31, s2, {YP_STRIDE}")
            A(f"s_add_u32 s31, s31, {YP_OFF}")
            for k in range(3):
                A(f"buffer_load_dwordx4 v[{212+4*k}:{215+4*k}], v2, s[16:19], s31 offen offset:{k*1024} sc1")
            self.setexec(0xffffffff)
            A(f"buffer_load_dwordx4 v[224:227], v2, s[16:19], s31 offen offset:3072 sc1")
            self.setexec(-1)
        if self.warm == 1:
            C("touch this workgroup's hand-off lines early (stale tag) so the final stores / polls find them in the memory-side cache")
            A("v_mov_b32 v4, 0"); A("v_mov_b32 v5, s35"); A("v_mov_b32 v6, 0"); A("v_mov_b32 v7, s35")
            A("v_lshlrev_b32 v2, 4, v0")
            A(f"s_mul_i32 s31, s2, {REC_STRIDE}")
            A(f"s_add_u32 s31, s31, {REC_OFF}")
            for k in range(4):
                A(f"buffer_store_dwordx4 v[4:7], v2, s[16:19], s31 offen offset:{k*1024} sc1")
            A("s_add_u32 s31, s31, 4096")
            self.setexec(3)
            A("buffer_store_dwordx4 v[4:7], v2, s[16:19], s31 offen sc1")
            self.setexec(-1)
            A(f"s_mul_i32 s31, s2, {YP_STRIDE}")
            A(f"s_add_u32 s31, s31, {YP_OFF}")
            for k in range(3):
                A(f"buffer_store_dwordx4 v[4:7], v2, s[16:19], s31 offen offset:{k*1024} sc1")
            self.setexec(0xffffffff)
            A(f"buffer_store_dwordx4 v[4:7], v2, s[16:19], s31 offen offset:3072 sc1")
            self.setexec(-1)
        if not self.latewo:
            self.srd(20, 44, 4096 * 896)
            A("v_and_b32 v2, 15, v0")
            A("v_lshrrev_b32 v3, 4, v0")
            A("v_mul_u32_u24 v4, 896, v3")
            A("v_lshl_add_u32 v4, v2, 4, v4")
            A("s_lshl_b32 s30, s2, 4")
            A("s_mul_i32 s30, s30, 896")
            for t in range(4):
                A(f"s_add_u32 s31, s30, {t*4*896}")
                for cb in range(4):
                    b = 128 + (t * 4 + cb) * 4
                    A(f"buffer_load_dwordx4 v[{b}:{b+3}], v4, s[20:23], s31 offen offset:{cb*256} nt")
        self.masks()
        C("ticket loop: home range -> common pool of the head -> steal from other ranges")
        RX = self.RX
        DX = RX - SPR
        DC = 4096 - 8 * RX
        A("s_mov_b32 s66, 0")
        A("s_mov_b32 s67, s6")
        A(f"s_mov_b32 s77, {DX}")
        A(f"s_mul_i32 s80, s6, {RX}")
        A(f"s_add_u32 s80, s80, {SPR}")
        A("s_mov_b32 s79, 0")
        A("s_mov_b32 s75, 0")
        A("s_mov_b32 s78, 4")
        A(f"s_mov_b32 s76, {self.LVL}")
        A(f"v_mov_b32 v13, {L_CNT}")
        A("v_lshlrev_b32 v17, 8, v0")
        A("s_lshl_b32 s68, s4, 12")
        A(f"s_add_u32 s68, s68, {CTR_OFF}")
        self.label("L_floop")
        self.label("L_floop1")
        A("ds_read_b32 v14, v13")
        A("s_waitcnt lgkmcnt(0)")
        A("v_readfirstlane_b32 s70, v14")
        self.nop(2)
        A("s_sub_i32 s71, s66, s70")
        A("s_cmp_le_i32 s71, s76")
        A("s_cbranch_scc1 L_fgo0")
        A("s_sleep 2")
        A("s_branch L_floop1")
        self.label("L_fgo0")
        A("s_cmp_lg_u32 s75, 0")
        A("s_cbranch_scc1 L_fnext")
        self.label("L_fgo")
        A("s_lshl_b32 s71, s67, 8")
        A("v_mov_b32 v15, s71")
        A("v_mov_b32 v12, s78")
        self.setexec(1)
        A("buffer_atomic_add v12, v15, s[16:19], s68 offen sc0 sc1")
        if self.pairg:
            A("s_cmp_eq_u32 s79, 0")
            A("s_cbranch_scc1 L_fnog")
            self.setexec(0xff)
            A("buffer_load_dword v16, v17, s[16:19], s68 offen sc1")
            self.label("L_fnog")
        A("s_waitcnt vmcnt(0)")
        self.setexec(1)
        A("v_readfirstlane_b32 s70, v12")
        self.setexec(-1)
        self.nop(2)
        A("s_cmp_lt_u32 s70, s77")
        A("s_cbranch_scc1 L_fgot")
        if self.pairg:
            A("s_cmp_eq_u32 s79, 0")
            A("s_cbranch_scc1 L_fnext")
            A("v_mov_b32 v14, v16")
            A("s_mov_b32 s75, 0")
            A("s_branch L_fpick")
        self.label("L_fnext")
        A("s_mov_b32 s75, 0")
        A("s_cmp_lg_u32 s79, 0")
        A("s_cbranch_scc1 L_fsteal")
        if DC > 0:
            A("s_mov_b32 s79, 1")
            A("s_mov_b32 s67, 8")
            A(f"s_mov_b32 s77, {DC}")
            A(f"s_mov_b32 s80, {8*RX}")
            A("s_branch L_fgo")
        self.label("L_fsteal")
        A("s_mov_b32 s79, 2")
        A(f"s_mov_b32 s78, {self.NE}")
        A(f"s_mov_b32 s76, {self.LVLE}")
        A("v_lshlrev_b32 v15, 8, v0")
        self.setexec(0xff)
        A("buffer_load_dword v14, v15, s[16:19], s68 offen sc1")
        A("s_waitcnt vmcnt(0)")
        self.label("L_fpick")
        A("s_mov_b32 s79, 2")
        A(f"s_mov_b32 s78, {self.NE}")
        A(f"s_mov_b32 s76, {self.LVLE}")
        self.setexec(0xff)
        A(f"v_cmp_gt_u32 vcc, {DX}, v14")
        self.setexec(-1)
        self.nop(2)
        A("s_and_b32 s71, vcc_lo, 0xff")
        A("s_cmp_eq_u32 s71, 0")
        A("s_cbranch_scc1 L_fend")
        A("s_lshl_b32 s73, s71, 8")
        A("s_or_b32 s73, s73, s71")
        A("s_add_u32 s74, s6, 1")
        A("s_lshr_b32 s73, s73, s74")
        A("s_ff1_i32_b32 s73, s73")
        A("s_add_u32 s67, s74, s73")
        A("s_and_b32 s67, s67, 7")
        A(f"s_mov_b32 s77, {DX}")
        A(f"s_mul_i32 s80, s67, {RX}")
        A(f"s_add_u32 s80, s80, {SPR}")
        A("s_branch L_fgo")
        self.label("L_fgot")
        A("s_sub_u32 s71, s77, s70")
        A("s_min_u32 s71, s71, s78")
        A("s_add_u32 s73, s80, s70")
        A("v_add_u32 v14, s73, v0")
        A("v_add_u32 v15, s66, v0")
        A("v_lshlrev_b32 v15, 2, v15")
        A("s_lshl_b32 s74, 1, s71")
        A("s_sub_u32 s74, s74, 1")
        A("s_mov_b32 exec_lo, s74")
        A("s_mov_b32 exec_hi, 0")
        A(f"ds_write_b32 v15, v14 offset:{L_TBL}")
        self.setexec(-1)
        A("s_add_u32 s66, s66, s71")
        A("s_add_u32 s70, s70, s71")
        A("s_cmp_ge_u32 s70, s77")
        A("s_cselect_b32 s75, 1, 0")
        A("s_cmp_lg_u32 s79, 1")
        A("s_cbranch_scc1 L_floop")
        A(f"s_cmp_lt_u32 s70, {DC - self.X}")
        A("s_cbranch_scc1 L_floop")
        A(f"s_mov_b32 s78, {self.NE}")
        A(f"s_mov_b32 s76, {self.LVLE}")
        A("s_branch L_floop")
        self.label("L_fend")
        A("v_mov_b32 v14, 4096")
        A("v_add_u32 v15, s66, v0")
        A("v_lshlrev_b32 v15, 2, v15")
        self.setexec(0xff)
        A(f"ds_write_b32 v15, v14 offset:{L_TBL}")
        self.setexec(-1)
        self.stamp(5)
        if self.latewo:
            self.srd(20, 44, 4096 * 896)
            A("v_and_b32 v2, 15, v0")
            A("v_lshrrev_b32 v3, 4, v0")
            A("v_mul_u32_u24 v4, 896, v3")
            A("v_lshl_add_u32 v4, v2, 4, v4")
            A("s_lshl_b32 s30, s2, 4")
            A("s_mul_i32 s30, s30, 896")
            for t in range(4):
                A(f"s_add_u32 s31, s30, {t*4*896}")
                for cb in range(4):
                    b = 128 + (t * 4 + cb) * 4
                    A(f"buffer_load_dwordx4 v[{b}:{b+3}], v4, s[20:23], s31 offen offset:{cb*256} nt")
        self.label("L_cbt1")
        C("hop 1 addresses: lane l: rec 8n + (l>>3), piece l&7 (2 granules)")
        A("v_lshrrev_b32 v96, 3, v0")
        A("v_lshlrev_b32 v96, 13, v96")
        A("v_and_b32 v3, 7, v0")
        A("v_lshl_add_u32 v97, v3, 4, v96")
        A("s_lshl_b32 s30, s4, 18")
        A(f"s_add_u32 s30, s30, {REC_OFF}")
        A("s_lshl_b32 s81, s5, 7")
        A("s_add_u32 s81, s81, s30")
        A("s_lshr_b32 s85, s5, 4")
        A("s_lshl_b32 s85, s85, 4")
        A("s_add_u32 s85, s85, s30")
        A("s_add_u32 s85, s85, 4096")
        for n in range(1, 4):
            A(f"s_add_u32 s{81+n}, s81, {n*0x10000}")
            A(f"s_add_u32 s{85+n}, s85, {n*0x10000}")
        A("s_waitcnt lgkmcnt(0)")
        A("s_barrier")
        self.stamp(6)
        self.stamp(7)
        PS = [192, 224]
        def issue(P):
            for n in range(4):
                A(f"buffer_load_dwordx4 v[{P+4*n}:{P+3+4*n}], v97, s[16:19], s{81+n} offen sc1")
                A(f"buffer_load_dwordx4 v[{P+16+4*n}:{P+19+4*n}], v96, s[16:19], s{85+n} offen sc1")
        if self.pipe:
            p = self.new("poll1"); g0 = self.new("got0"); g1 = self.new("got1"); cont = self.new("cont1")
            if self.stamps: A("s_mov_b32 s93, 0")
            issue(PS[0])
            self.label(p)
            for (cur, oth, gl) in ((0, 1, g0), (1, 0, g1)):
                issue(PS[oth])
                A("s_waitcnt vmcnt(8)")
                if self.stamps:
                    A("s_add_u32 s93, s93, 1")
                    A("s_memrealtime s[90:91]")
                    A("s_waitcnt lgkmcnt(0)")
                    A("s_min_u32 s92, s93, 30")
                    A("s_add_u32 s92, s92, 31")
                    A("s_mov_b32 m0, s92")
                    A("s_nop 0")
                    A("v_writelane_b32 v127, s90, m0")
                self.check_tags([f"v{PS[cur]+1+2*k}" for k in range(16)], "v12")
                A(f"s_cbranch_vccz {gl}")
            A(f"s_branch {p}")
            for (cur, gl) in ((1, g1), (0, g0)):
                self.label(gl)
                P = PS[cur]
                for n in range(4):
                    A(f"v_mov_b32 v{32+4*n}, v{P+4*n}")
                    A(f"v_mov_b32 v{34+4*n}, v{P+2+4*n}")
                    A(f"v_mov_b32 v{64+4*n}, v{P+16+4*n}")
                    A(f"v_mov_b32 v{66+4*n}, v{P+18+4*n}")
                if cur == 1: A(f"s_branch {cont}")
            self.label(cont)
        else:
            p = self.new("poll1"); pd = self.new("poll1d")
            if self.stamps: A("s_mov_b32 s93, 0")
            if self.sleep0: A(f"s_sleep {self.sleep0}")
            self.label(p)
            for n in range(4):
                A(f"buffer_load_dwordx4 v[{32+4*n}:{35+4*n}], v97, s[16:19], s{81+n} offen sc1")
                A(f"buffer_load_dwordx4 v[{64+4*n}:{67+4*n}], v96, s[16:19], s{85+n} offen sc1")
            A("s_waitcnt vmcnt(0)")
            if self.stamps:
                A("s_add_u32 s93, s93, 1")
                A("s_memrealtime s[90:91]")
                A("s_waitcnt lgkmcnt(0)")
                A("s_min_u32 s92, s93, 30")
                A("s_add_u32 s92, s92, 31")
                A("s_mov_b32 m0, s92")
                A("s_nop 0")
                A("v_writelane_b32 v127, s90, m0")
            self.check_tags([f"v{33+2*k}" for k in range(8)] + [f"v{65+2*k}" for k in range(8)], "v12")
            A(f"s_cbranch_vccz {pd}")
            if self.masked: A("s_mov_b64 exec, vcc")
            if self.sleep: A(f"s_sleep {self.sleep}")
            A(f"s_branch {p}")
            self.label(pd)
            self.setexec(-1)
        self.stamp(8)
        if self.stamps: A("v_writelane_b32 v127, s93, 30")
        A("v_max3_f32 v48, v64, v68, v72")
        A("v_max_f32 v48, v48, v76")
        self.allreduce("max", "v48", "v49", steps=("ror8", "p16", "p32"))
        for n in range(4):
            A(f"v_sub_f32 v{64+4*n}, v{64+4*n}, v48")
            A(f"v_mul_f32 v{64+4*n}, s60, v{64+4*n}")
            A(f"v_exp_f32 v{64+4*n}, v{64+4*n}")
        A("s_nop 0")
        A("v_mul_f32 v50, v64, v66"); A("v_mul_f32 v51, v64, v32"); A("v_mul_f32 v52, v64, v34")
        for n in range(1, 4):
            A(f"v_fmac_f32 v50, v{64+4*n}, v{66+4*n}")
            A(f"v_fmac_f32 v51, v{64+4*n}, v{32+4*n}")
            A(f"v_fmac_f32 v52, v{64+4*n}, v{34+4*n}")
        self.allreduce_multi("add", ["v50", "v51", "v52"], ["v53", "v54", "v55"], ("ror8", "p16", "p32"))
        A("v_rcp_f32 v53, v50")
        A("s_nop 0")
        for r in ("v51", "v52"):
            A(f"v_mul_f32 v54, {r}, v53")
            A(f"v_fma_f32 v55, -v54, v50, {r}")
            A(f"v_fma_f32 {r}, v55, v53, v54")
        A("v_lshrrev_b32 v3, 4, v0")
        A("v_and_b32 v5, 1, v3")
        A("v_cmp_eq_u32 vcc, 1, v5"); self.nop(2)
        A("v_cndmask_b32 v51, v51, v52, vcc")
        A("v_cvt_pk_bf16_f32 v51, v51, v51")
        self.nop(2)
        for t in range(4):
            A(f"v_mov_b32_dpp v{40+t}, v51 row_newbcast:{2*t} row_mask:0x3 bank_mask:0xf")
            A(f"v_mov_b32_dpp v{40+t}, v51 row_newbcast:{2*t+1} row_mask:0xc bank_mask:0xf")
        for cb in range(4):
            A(f"v_mov_b32 v{81+4*cb}, {TAG}"); A(f"v_mov_b32 v{83+4*cb}, {TAG}")
        A("v_cmp_lt_u32 s[78:79], 31, v0")
        for t in range(4):
            a = 44 + 4 * (t & 1)
            for k in range(4):
                A(f"v_and_b32 v{a+k}, v{8+k}, v{40+t}")
            self.nop(2)
            for cb in range(4):
                b = 128 + (t * 4 + cb) * 4
                src = "0" if t == 0 else f"v[{64+4*cb}:{67+4*cb}]"
                A(f"v_mfma_f32_16x16x32_bf16 v[{64+4*cb}:{67+4*cb}], v[{a}:{a+3}], v[{b}:{b+3}], {src}")
        A("v_and_b32 v2, 15, v0")
        A("v_lshlrev_b32 v4, 6, v2")
        A("v_and_b32 v5, 1, v3")
        A("v_lshl_add_u32 v4, v5, 5, v4")
        A("v_lshrrev_b32 v5, 1, v3")
        A("v_lshl_add_u32 v4, v5, 4, v4")
        A(f"s_mul_i32 s31, s2, {YP_STRIDE}")
        A(f"s_add_u32 s31, s31, {YP_OFF}")
        self.nop(2)
        for cb in range(4):
            A(f"v_cndmask_b32 v{80+4*cb}, v{64+4*cb}, v{66+4*cb}, s[78:79]")
            A(f"v_cndmask_b32 v{82+4*cb}, v{65+4*cb}, v{67+4*cb}, s[78:79]")
            if cb == 3: self.setexec(0x00ff00ff00ff00ff)
            A(f"buffer_store_dwordx4 v[{80+4*cb}:{83+4*cb}], v4, s[16:19], s31 offen offset:{cb*1024} sc1")
        self.setexec(-1)
        self.stamp(9)
        if self.stamps and self.ackst:
            A("s_waitcnt vmcnt(0)")
            self.stamp(12)
        A("s_cmp_ge_u32 s89, 112")
        A("s_cbranch_scc1 L_cend")
        A("s_barrier")
        self.srd(20, 54, 896)
        A(f"v_mov_b32 v2, {L_R}")
        A("s_barrier")
        A(f"ds_read_b128 v[112:115], v2 offset:{L_FX - L_R}")
        A(f"ds_read_b64 v[120:121], v2 offset:{L_FX - L_R + 16}")
        for w in range(4):
            A(f"ds_read_b128 v[{32+4*w}:{35+4*w}], v2 offset:{w*16}")
        A("s_waitcnt lgkmcnt(0)")
        A("v_lshlrev_b32 v48, 16, v120"); A("v_and_b32 v49, 0xffff0000, v120")
        A("v_lshlrev_b32 v50, 16, v121"); A("v_and_b32 v51, 0xffff0000, v121")
        for k in range(4):
            A(f"v_add_f32 v{32+k}, v{32+k}, v{36+k}")
            A(f"v_add_f32 v{40+k}, v{40+k}, v{44+k}")
            A(f"v_add_f32 v{32+k}, v{32+k}, v{40+k}")
            self.bf16r(f"v{32+k}")
            A(f"v_add_f32 v{32+k}, v{48+k}, v{32+k}")
            self.bf16r(f"v{32+k}")
            A(f"v_add_f32 v{32+k}, v{32+k}, v{112+k}")
        A("v_cvt_pk_bf16_f32 v32, v32, v33")
        A("v_cvt_pk_bf16_f32 v33, v34, v35")
        A("s_lshl_b32 s31, s89, 3")
        A("v_mov_b32 v2, 0")
        self.setexec(1)
        A("buffer_store_dwordx2 v[32:33], v2, s[20:23], s31 offen")
        A("s_cmp_lg_u32 s89, 0")
        e0 = self.new("e")
        A(f"s_cbranch_scc1 {e0}")
        A(f"v_mov_b32 v4, {TAG}")
        A(f"buffer_store_dword v4, v2, s[16:19], 0 offen offset:{EP_OFF}")
        self.label(e0)
        self.setexec(-1)
        self.stamp(10)
        self.label("L_cend")
        if self.dbgst: self.dbg_dump()
        if self.stamps:
            A("v_lshlrev_b32 v2, 2, v0")
            A("s_lshl_b32 s31, s2, 8")
            A(f"s_add_u32 s31, s31, {ST_OFF}")
            A("buffer_store_dword v127, v2, s[16:19], s31 offen")
        A("s_branch L_end")

    def build(self):
        A = self.A
        L = self.L
        L.append(HEADER.rstrip())
        L.append(f"; @launch grid=({NWG},1,1) block=({NW*64},1,1) lds={LDS_SIZE}")
        L.append("""; Design (generated by a script of mine; one persistent launch, 256 workgroups x 8 waves, one workgroup per CU):
;  * hand-offs between workgroups use 8-byte {value, tag} granules written / read with sc1; tag = (word found in d_ws) + 1,
;  * tail: per-workgroup (max, sum, o) record -> 16 output-projection rows per workgroup -> 112 workgroups x 4 output columns.""")
        L.append('.amdgcn_target "amdgcn-amd-amdhsa--gfx950"')
        L.append(".text")
        L.append(f".globl {NAME}_kernel")
        L.append(".p2align 8")
        L.append(f".type {NAME}_kernel,@function")
        L.append(f"{NAME}_kernel:")
        A(f"s_cmp_ge_u32 s2, {NWG}")
        A("s_cbranch_scc1 L_end")
        A("s_load_dwordx16 s[36:51], s[0:1], 0")
        A("s_load_dwordx8 s[52:59], s[0:1], 64")
        A("v_lshrrev_b32 v1, 6, v0")
        A("v_and_b32 v0, 63, v0")
        A("s_lshr_b32 s4, s2, 5")
        A("v_readfirstlane_b32 s3, v1")
        A("s_and_b32 s5, s2, 31")
        A("s_and_b32 s6, s2, 7")
        A("s_lshr_b32 s7, s2, 3")
        A("s_and_b32 s7, s7, 3")
        A("s_lshr_b32 s29, s2, 2")
        A("s_lshr_b32 s33, s5, 2")
        A("s_lshl_b32 s33, s33, 3")
        A("s_add_u32 s33, s33, s4")
        A("s_and_b32 s30, s2, 3")
        A("s_mov_b32 s28, 1")
        A("s_cmp_eq_u32 s30, 0")
        A("s_cselect_b32 s28, 0, s28")
        A("s_cmp_lt_u32 s33, 28")
        A("s_cselect_b32 s31, 2, 1")
        A("s_cmp_eq_u32 s30, 1")
        A("s_cselect_b32 s28, s31, s28")
        if self.allN: A("s_mov_b32 s28, 1")
        A(f"s_sub_u32 s89, s2, {self.OWN0}")
        A(f"s_mov_b32 s60, {hex(f2u(CEXP))}")
        if self.stamps or self.dbgst:
            A("v_mov_b32 v127, 0")
        A("s_waitcnt lgkmcnt(0)")
        A(f"s_load_dword s35, s[58:59], {EP_OFF}")
        A("s_lshl_b32 s30, s4, 25")
        A("s_add_u32 s8, s38, s30")
        A("s_addc_u32 s9, s39, 0")
        A("s_and_b32 s9, s9, 0xffff")
        A("s_mov_b32 s10, 0x2000000")
        A("s_mov_b32 s11, 0x00020000")
        A("s_add_u32 s12, s40, s30")
        A("s_addc_u32 s13, s41, 0")
        A("s_and_b32 s13, s13, 0xffff")
        A("s_mov_b32 s14, 0x2000000")
        A("s_mov_b32 s15, 0x00020000")
        self.srd(16, 58, WS_SIZE)
        A(f"s_cmp_eq_u32 s3, {NWK}")
        A("s_cbranch_scc1 L_control")
        self.worker()
        self.ffn_wave()
        self.control()
        self.label("L_end")
        A("s_endpgm")
        L.append('.section .rodata,"a"')
        L.append(".p2align 6")
        L.append(f".amdhsa_kernel {NAME}_kernel")
        L.append("  .amdhsa_next_free_vgpr 256")
        L.append("  .amdhsa_next_free_sgpr 100")
        L.append("  .amdhsa_accum_offset 256")
        L.append("  .amdhsa_group_segment_fixed_size 0")
        L.append("  .amdhsa_kernarg_size 96")
        L.append("  .amdhsa_user_sgpr_count 2")
        L.append("  .amdhsa_user_sgpr_kernarg_segment_ptr 1")
        L.append("  .amdhsa_system_sgpr_workgroup_id_x 1")
        L.append(".end_amdhsa_kernel")
        return "\n".join(L) + "\n"

if __name__ == "__main__":
    out = sys.argv[1]
    kw = json.loads(sys.argv[2]) if len(sys.argv) > 2 else {}
    open(out, "w").write(Gen(**kw).build())
```

```python
import sys, json, struct
NAME = "parallel_sum__gqa_block_cached__glu_gated_reglu__decode"
HEADER = open("cdna_kernels/%s.s.ref" % NAME).read().split("; Override launch geometry")[0]

NWG = 256
NWK = 7
NW = NWK + 1
EP_OFF = 0x0
Q_OFF = 0x1000
CTR_OFF = 0x8000
REC_OFF = 0x10000
REC_STRIDE = 8192
YP_OFF = 0x210000
YP_STRIDE = 3584
ST_OFF = 0x380000
WS_SIZE = 0x800000
L_CNT = 0
L_QF = 4
L_TBL = 64
TBL_KB = 14
L_XD = L_TBL + TBL_KB * 1024 + 192
L_Q = L_XD + 1792
L_HD = L_Q + 1024
L_P = L_HD + 256
L_M = L_P + 8192
L_R = L_M + NWK * 2304
L_FX = L_R + 64
LDS_SIZE = L_FX + 64
CEXP = 0.09016844005556021
def f2u(f): return struct.unpack("<I", struct.pack("<f", f))[0]

NSTAT = 3
SPR = 4 * NWK * NSTAT
BT = 4
TAG = "s34"

class Gen:
    def __init__(self, RS=1, stamps=False, lead=1, Q=1, sleep=1, PF=1, ND=4, PF0=2, noq=False, nocomp=False, allN=False, nowo=False, direct=False, warm=False, dbgst=False, B=4, ackst=False, X=0, LVL=3, LVLE=3, pipe=False, sleep0=0, sleep2=1, RX=448, latewo=True, masked=True, OWN0=0, noffnpart=False, NE=4, STR=2048, pairg=True, noround=False):
        self.L = []
        self.noround = noround; self.pairg = pairg; self.STR = STR; self.NE = NE; self.noffnpart = noffnpart; self.OWN0 = OWN0; self.masked = masked; self.latewo = latewo; self.RX = RX; self.pipe = pipe; self.sleep0 = sleep0; self.sleep2 = sleep2; self.X = X; self.LVL = LVL; self.LVLE = LVLE; self.ackst = ackst; self.B = B; self.LB = B.bit_length() - 1; self.dbgst = dbgst; self.warm = warm; self.direct = direct; self.allN = allN; self.nowo = nowo; self.noq = noq; self.nocomp = nocomp; self.PF = PF; self.ND = ND; self.PF0 = PF0; self.RS = RS; self.stamps = stamps; self.lead = lead; self.Q = Q; self.sleep = sleep
        self.uid = 0
    def A(self, s): self.L.append("  " + s)
    def C(self, s): self.L.append("  ; " + s)
    def label(self, s): self.L.append(s + ":")
    def nop(self, n):
        while n > 0:
            k = min(n, 16); self.A(f"s_nop {k-1}"); n -= k
    def setexec(self, m):
        if m == -1 or 0 <= m <= 64:
            self.A(f"s_mov_b64 exec, {m}")
        else:
            self.A(f"s_mov_b32 exec_lo, {hex(m & 0xffffffff)}")
            self.A(f"s_mov_b32 exec_hi, {hex(m >> 32)}")
    def new(self, p):
        self.uid += 1
        return f"L_{p}_{self.uid}"
    def stamp(self, k):
        A = self.A
        if not (self.stamps or self.dbgst): return
        A("s_memrealtime s[90:91]")
        A("s_waitcnt lgkmcnt(0)")
        A(f"v_writelane_b32 v127, s90, {2*k}")
        A(f"v_writelane_b32 v127, s91, {2*k+1}")
    def dbg_dump(self):
        A = self.A
        self.srd(84, 56, 256)
        A("s_mov_b64 exec, 1")
        for k, m in {0: (0, 1), 3: (None, 2), 5: (3, 4), 6: (10, 5), 7: (None, 6), 8: (None, 7), 9: (None, 8), 10: (None, 9), 4: (None, 11), 2: (None, 12)}.items():
            A(f"v_readlane_b32 s90, v127, {2*k}")
            A("s_nop 3")
            if m[0] is not None:
                A("s_not_b32 s91, s90")
                A("v_mov_b32 v122, s91")
                A(f"v_mov_b32 v123, {4*m[0]}")
                A("buffer_atomic_umax v122, v123, s[84:87], 0 offen sc1")
                A("s_nop 2")
            A("v_mov_b32 v124, s90")
            A(f"v_mov_b32 v125, {4*m[1]}")
            A("buffer_atomic_umax v124, v125, s[84:87], 0 offen sc1")
            A("s_nop 2")
        A("s_mov_b64 exec, -1")
    def allreduce(self, op, v, tmp, steps=("q1", "q2", "hm", "rm", "p16", "p32")):
        A = self.A
        for st in steps:
            if st in ("q1", "q2", "hm", "rm", "ror4", "ror8"):
                mod = {"q1": "quad_perm:[1,0,3,2]", "q2": "quad_perm:[2,3,0,1]", "hm": "row_half_mirror", "rm": "row_mirror",
                       "ror4": "row_ror:4", "ror8": "row_ror:8"}[st]
                self.nop(2)
                A(f"v_{op}_f32_dpp {v}, {v}, {v} {mod} row_mask:0xf bank_mask:0xf")
            else:
                A(f"v_mov_b32 {tmp}, {v}")
                self.nop(2)
                A(f"v_permlane{'16' if st == 'p16' else '32'}_swap_b32 {tmp}, {v}")
                self.nop(1)
                A(f"v_{op}_f32 {v}, {tmp}, {v}")
    def allreduce_multi(self, op, vs, tmps, steps):
        A = self.A
        n = len(vs)
        assert n >= 3
        self.nop(2)
        for st in steps:
            if st in ("q1", "q2", "hm", "rm", "ror4", "ror8"):
                mod = {"q1": "quad_perm:[1,0,3,2]", "q2": "quad_perm:[2,3,0,1]", "hm": "row_half_mirror", "rm": "row_mirror",
                       "ror4": "row_ror:4", "ror8": "row_ror:8"}[st]
                for v in vs:
                    A(f"v_{op}_f32_dpp {v}, {v}, {v} {mod} row_mask:0xf bank_mask:0xf")
            else:
                for v, t in zip(vs, tmps): A(f"v_mov_b32 {t}, {v}")
                self.nop(2)
                for v, t in zip(vs, tmps): A(f"v_permlane{'16' if st == 'p16' else '32'}_swap_b32 {t}, {v}")
                self.nop(1)
                for v, t in zip(vs, tmps): A(f"v_{op}_f32 {v}, {t}, {v}")
    def srd(self, s, ptr, size):
        A = self.A
        A(f"s_mov_b32 s{s}, s{ptr}")
        A(f"s_and_b32 s{s+1}, s{ptr+1}, 0xffff")
        A(f"s_mov_b32 s{s+2}, {size}")
        A(f"s_mov_b32 s{s+3}, 0x00020000")
    def bf16r(self, v):
        self.A(f"v_cvt_pk_bf16_f32 {v}, {v}, {v}")
        self.A(f"v_and_b32 {v}, 0xffff0000, {v}")

    BUF = {0: 64, 1: 128, 2: 192}
    KOFF = [(c >> 1) * 2048 + (c & 1) * 256 for c in range(8)]
    def tile_addr(self, treg):
        A = self.A
        STR = self.STR
        J = STR // 2048
        LJ = J.bit_length() - 1
        A(f"s_lshr_b32 s72, {treg}, {LJ}")
        A(f"s_mul_i32 s72, s72, {4*STR}")
        A(f"s_and_b32 s73, {treg}, {J-1}")
        A("s_lshl_b32 s73, s73, 11")
        A("s_add_u32 s72, s72, s73")
        for r in range(1, 4):
            A(f"s_add_u32 s{72+r}, s72, {r*STR}")
    def ld_tile(self, kind, buf, sreg=None):
        b = self.BUF[buf] + (0 if kind == "K" else 32)
        v = "v4" if kind == "K" else "v6"
        srd = "s[8:11]" if kind == "K" else "s[12:15]"
        for c in range(8):
            r, u = c >> 1, c & 1
            self.A(f"buffer_load_dwordx4 v[{b+4*c}:{b+4*c+3}], {v}, {srd}, s{72+r} offen offset:{u*256} nt")
    def qk(self, buf):
        b = self.BUF[buf]
        for u in range(2):
            for r in range(4):
                c = 2 * r + u
                src = "0" if u == 0 else f"v[{32+4*r}:{35+4*r}]"
                self.A(f"v_mfma_f32_16x16x32_bf16 v[{32+4*r}:{35+4*r}], v[{b+4*c}:{b+4*c+3}], v[{12+4*u}:{15+4*u}], {src}")
    def softmax(self, rare_blocks):
        A = self.A
        if self.nocomp: return
        for r in range(4):
            A(f"v_mov_b32_dpp v{48+r}, v{32+4*r} quad_perm:[0,0,0,0] row_mask:0xf bank_mask:0xf")
        for k in range(1, 4):
            for r in range(4):
                A(f"v_add_f32_dpp v{48+r}, v{32+4*r+k}, v{48+r} quad_perm:[{k},{k},{k},{k}] row_mask:0xf bank_mask:0xf")
        if not self.noround:
            A("v_cvt_pk_bf16_f32 v52, v48, v49")
            A("v_cvt_pk_bf16_f32 v53, v50, v51")
            A("v_lshlrev_b32 v48, 16, v52")
            A("v_and_b32 v49, 0xffff0000, v52")
            A("v_lshlrev_b32 v50, 16, v53")
            A("v_and_b32 v51, 0xffff0000, v53")
        A("v_max3_f32 v52, v48, v49, v50")
        A("v_max_f32 v52, v52, v51")
        A("v_cmp_gt_f32 vcc, v52, v28")
        rare = self.new("rare"); back = self.new("back")
        self.nop(1)
        A(f"s_cbranch_vccnz {rare}")
        self.label(back)
        for r in range(4):
            A(f"v_fma_f32 v{52+r}, v{48+r}, s60, -v29")
        for r in range(4):
            A(f"v_exp_f32 v{52+r}, v{52+r}")
        A("s_nop 0")
        for r in range(4):
            A(f"v_cvt_pk_bf16_f32 v{56+r}, v{52+r}, v{52+r}")
        A("v_add_f32 v52, v52, v53")
        A("v_add_f32 v54, v54, v55")
        A("v_add_f32 v30, v30, v52")
        A("v_add_f32 v30, v30, v54")
        rare_blocks.append((rare, back))
    def rare_block(self, rare, back):
        A = self.A
        self.label(rare)
        self.allreduce("max", "v52", "v53", steps=("p16", "p32"))
        A("v_max_f32 v52, v52, v28")
        A("v_sub_f32 v53, v28, v52")
        A("v_mul_f32 v53, s60, v53")
        A("v_exp_f32 v53, v53")
        A("v_mov_b32 v28, v52")
        A("v_mul_f32 v29, s60, v52")
        A("v_mul_f32 v30, v30, v53")
        A("v_readlane_b32 s62, v53, 0")
        A("v_readlane_b32 s63, v53, 8")
        self.nop(2)
        A("v_mov_b32 v54, s63")
        A("v_mov_b32 v55, s62")
        A("v_cndmask_b32 v54, v54, v55, s[64:65]")
        self.nop(3)
        for k in range(8):
            A(f"v_mul_f32 v{20+k}, v{20+k}, v54")
        self.nop(2)
        A(f"s_branch {back}")
    def pv(self, buf):
        A = self.A
        b = self.BUF[buf] + 32
        for r in range(4):
            a = 32 + 4 * (r & 1)
            for k in range(4):
                A(f"v_and_b32 v{a+k}, v{8+k}, v{56+r}")
            self.nop(2)
            for u in range(2):
                c = 2 * r + u
                A(f"v_mfma_f32_16x16x32_bf16 v[{20+4*u}:{23+4*u}], v[{a}:{a+3}], v[{b+4*c}:{b+4*c+3}], v[{20+4*u}:{23+4*u}]")
        self.wstamp()
    def wstamp(self):
        if not self.stamps: return
        A = self.A
        A("s_memrealtime s[90:91]")
        A("s_waitcnt lgkmcnt(0)")
        A("s_mov_b32 m0, s94")
        A("s_nop 0")
        A("v_writelane_b32 v63, s90, m0")
        A("v_writelane_b32 v1, s95, m0")
        A("s_mov_b32 s95, s69")
        A("s_add_u32 s94, s94, 1")
    def pop_issue(self):
        self.setexec(1)
        self.A("ds_add_rtn_u32 v31, v60, v61")
        self.setexec(-1)
    def pop_resolve(self, endlabel):
        A = self.A
        A("s_waitcnt lgkmcnt(0)")
        self.setexec(1)
        A("v_lshlrev_b32 v62, 2, v31")
        spin = self.new("spin")
        self.label(spin)
        A(f"ds_read_b32 v31, v62 offset:{L_TBL}")
        A("s_waitcnt lgkmcnt(0)")
        A("v_readfirstlane_b32 s66, v31")
        self.nop(2)
        A("s_cmp_eq_u32 s66, -1")
        A(f"s_cbranch_scc1 {spin}")
        self.setexec(-1)
        A("s_cmp_ge_u32 s66, 4096")
        A(f"s_cbranch_scc1 {endlabel}")
        self.tile_addr("s66")
        if self.stamps: A("s_lshl_b32 s69, s66, 13")
    def gemv_strip(self, breg, acc, nt=14):
        A = self.A
        for t in range(nt):
            a = 48 + 4 * (t & 1)
            for k in range(4):
                A(f"v_and_b32 v{a+k}, v{8+k}, v{32+t}")
            self.nop(2)
            src = "0" if t == 0 else f"v[{acc}:{acc+3}]"
            A(f"v_mfma_f32_16x16x32_bf16 v[{acc}:{acc+3}], v[{a}:{a+3}], v[{breg+4*t}:{breg+4*t+3}], {src}")
    def masks(self):
        A = self.A
        A("v_and_b32 v1, 1, v0")
        A("v_lshlrev_b32 v1, 4, v1")
        A("v_mov_b32 v31, 0xffff")
        A("v_lshlrev_b32 v31, v1, v31")
        A("v_bfe_u32 v1, v0, 1, 2")
        for k in range(4):
            A(f"v_cmp_eq_u32 vcc, {k}, v1")
            self.nop(2)
            A(f"v_cndmask_b32 v{8+k}, 0, v31, vcc")
    def get_tag(self):
        self.A("s_waitcnt lgkmcnt(0)")
        self.A(f"s_add_u32 {TAG}, s35, 1")

    def ln(self):
        A = self.A
        for k in range(4):
            A(f"v_lshlrev_b32 v{12+2*k}, 16, v{8+k}")
            A(f"v_and_b32 v{13+2*k}, 0xffff0000, v{8+k}")
        A("v_add_f32 v20, v12, v13")
        for k in range(2, 8):
            A(f"v_add_f32 v20, v20, v{12+k}")
        self.allreduce("add", "v20", "v21")
        A(f"v_mul_f32 v20, {hex(f2u(1.0/448.0))}, v20")
        A("v_cmp_gt_u32 vcc, 56, v0")
        A("v_mov_b32 v22, 0")
        for k in range(8):
            A(f"v_sub_f32 v23, v{12+k}, v20")
            A("v_fmac_f32 v22, v23, v23")
        A("v_cndmask_b32 v22, 0, v22, vcc")
        self.allreduce("add", "v22", "v21")
        A(f"v_mul_f32 v22, {hex(f2u(1.0/448.0))}, v22")
        self.bf16r("v22")
        self.bf16r("v20")
        A(f"v_add_f32 v22, {hex(f2u(1e-5))}, v22")
        self.bf16r("v22")
        A("v_sqrt_f32 v22, v22")
        A("s_nop 0")
        self.bf16r("v22")
        A("v_rcp_f32 v23, v22")
        A("s_nop 0")
        for k in range(8):
            A(f"v_sub_f32 v{12+k}, v{12+k}, v20")
            self.bf16r(f"v{12+k}")
            A(f"v_mul_f32 v24, v{12+k}, v23")
            A(f"v_fma_f32 v25, -v24, v22, v{12+k}")
            A(f"v_fma_f32 v24, v25, v23, v24")
            A(f"v_cvt_pk_bf16_f32 v{12+k}, v24, v24")
        A("v_lshlrev_b32 v26, 5, v0")
        self.setexec(0x00ffffffffffffff)
        A(f"ds_write_b128 v26, v[12:15] offset:{L_XD}")
        A(f"ds_write_b128 v26, v[16:19] offset:{L_XD+16}")
        self.setexec(-1)
        A("s_waitcnt lgkmcnt(0)")

    def fstamp(self, k):
        if not self.stamps: return
        A = self.A
        A("s_memrealtime s[90:91]")
        A("s_waitcnt lgkmcnt(0)")
        A(f"v_writelane_b32 v29, s90, {k}")
    def ffn_wave(self):
        A = self.A; C = self.C
        C("FFN strip by one wave: gate/up (64 columns), h, down projection")
        self.label("L_ffn")
        self.srd(20, 36, 896)
        A("v_lshlrev_b32 v1, 4, v0")
        A("buffer_load_dwordx4 v[8:11], v1, s[20:23], 0 offen nt")
        self.srd(20, 48, 448 * 3584)
        self.srd(24, 50, 448 * 3584)
        A("v_lshrrev_b32 v2, 3, v0")
        A("s_mov_b32 s30, 3584")
        A("v_mul_lo_u32 v2, v2, s30")
        A("v_and_b32 v1, 7, v0")
        A("v_lshl_add_u32 v2, v1, 4, v2")
        A("s_lshl_b32 s30, s33, 7")
        GB = [64, 120, 176]
        chunks = [(m, q) for m in range(2) for q in range(4)]
        def issue(n):
            m, q = chunks[n]
            b = GB[n % 3]
            srd = "s[20:23]" if m == 0 else "s[24:27]"
            for t in range(14):
                A(f"s_add_u32 s31, s30, {(q*112 + t*8)*3584}")
                A(f"buffer_load_dwordx4 v[{b+4*t}:{b+4*t+3}], v2, {srd}, s31 offen nt")
        for n in range(3): issue(n)
        A("s_barrier")
        self.get_tag()
        if self.stamps: A("v_mov_b32 v29, 0")
        self.fstamp(0)
        A("s_waitcnt vmcnt(42)")
        self.fstamp(1)
        self.ln()
        self.fstamp(2)
        self.masks()
        A("v_lshrrev_b32 v3, 3, v0")
        A("v_lshlrev_b32 v3, 2, v3")
        for n in range(8):
            m, q = chunks[n]
            for t in range(14):
                A(f"ds_read_b32 v{32+t}, v3 offset:{L_XD + q*448 + t*32}")
            inflight = min(8, n + 3) - (n + 1)
            A(f"s_waitcnt vmcnt({14*inflight}) lgkmcnt(0)")
            acc = 56 if m == 0 else 60
            b = GB[n % 3]
            for t in range(14):
                a = 48 + 4 * (t & 1)
                for k in range(4):
                    A(f"v_and_b32 v{a+k}, v{8+k}, v{32+t}")
                self.nop(2)
                src = "0" if (t == 0 and q == 0) else f"v[{acc}:{acc+3}]"
                A(f"v_mfma_f32_16x16x32_bf16 v[{acc}:{acc+3}], v[{a}:{a+3}], v[{b+4*t}:{b+4*t+3}], {src}")
            if n + 3 < 8: issue(n + 3)
            self.fstamp(3 + n)
        self.srd(20, 52, 1792 * 896)
        A("v_and_b32 v4, 15, v0")
        A("v_lshrrev_b32 v5, 4, v0")
        A("v_mul_u32_u24 v6, 896, v5")
        A("v_lshl_add_u32 v6, v4, 4, v6")
        A("s_lshl_b32 s30, s33, 6")
        A("s_mul_i32 s30, s30, 896")
        DB = [64, 128, 192]
        def issue_d(n):
            b = DB[n % 3]
            for tt in range(4):
                A(f"s_add_u32 s31, s30, {(n*4+tt)*4*896}")
                for cb in range(4):
                    r = b + (tt * 4 + cb) * 4
                    A(f"buffer_load_dwordx4 v[{r}:{r+3}], v6, s[20:23], s31 offen offset:{cb*256} nt")
        for n in range(3): issue_d(n)
        A("v_lshlrev_b32 v7, 4, v0")
        self.nop(4)
        A(f"ds_write_b128 v7, v[56:59] offset:{L_P}")
        A(f"ds_write_b128 v7, v[60:63] offset:{L_P+1024}")
        A("v_and_b32 v2, 7, v0")
        A("v_bfe_u32 v3, v0, 3, 1")
        A("v_lshl_add_u32 v7, v3, 4, v2")
        A("v_lshlrev_b32 v7, 4, v7")
        A("s_waitcnt lgkmcnt(0)")
        A(f"ds_read_b128 v[32:35], v7 offset:{L_P}")
        A(f"ds_read_b128 v[36:39], v7 offset:{L_P+640}")
        A(f"ds_read_b128 v[40:43], v7 offset:{L_P+1024}")
        A(f"ds_read_b128 v[44:47], v7 offset:{L_P+1024+640}")
        A("s_waitcnt lgkmcnt(0)")
        for k in range(4):
            A(f"v_add_f32 v{32+k}, v{32+k}, v{36+k}")
            A(f"v_add_f32 v{40+k}, v{40+k}, v{44+k}")
            self.bf16r(f"v{32+k}")
            self.bf16r(f"v{40+k}")
            A(f"v_max_f32 v{32+k}, 0, v{32+k}")
            A(f"v_mul_f32 v{32+k}, v{32+k}, v{40+k}")
            A(f"v_cvt_pk_bf16_f32 v{32+k}, v{32+k}, v{32+k}")
        A("v_lshlrev_b32 v2, 5, v2")
        A("v_lshl_add_u32 v2, v3, 4, v2")
        self.setexec(0xffff)
        A(f"ds_write_b128 v2, v[32:35] offset:{L_HD}")
        self.setexec(-1)
        A("s_waitcnt lgkmcnt(0)")
        A("v_lshlrev_b32 v3, 2, v5")
        for t in range(16):
            A(f"ds_read_b32 v{12+t}, v3 offset:{L_HD + t*16}")
        A("s_waitcnt lgkmcnt(0)")
        for n in range(4):
            inflight = min(4, n + 3) - (n + 1)
            A(f"s_waitcnt vmcnt({16*inflight})")
            b = DB[n % 3]
            for tt in range(4):
                t = n * 4 + tt
                a = 48 + 4 * (t & 1)
                for k in range(4):
                    A(f"v_and_b32 v{a+k}, v{8+k}, v{12+t}")
                self.nop(2)
                for cb in range(4):
                    r = b + (tt * 4 + cb) * 4
                    src = "0" if t == 0 else f"v[{32+4*cb}:{35+4*cb}]"
                    A(f"v_mfma_f32_16x16x32_bf16 v[{32+4*cb}:{35+4*cb}], v[{a}:{a+3}], v[{r}:{r+3}], {src}")
            if n + 3 < 4: issue_d(n + 3)
            self.fstamp(12 + n)
        for cb in range(4):
            A(f"v_mov_b32 v{65+4*cb}, {TAG}"); A(f"v_mov_b32 v{67+4*cb}, {TAG}")
        A("v_cmp_lt_u32 s[78:79], 31, v0")
        A("v_lshlrev_b32 v6, 6, v4")
        A("v_and_b32 v7, 1, v5")
        A("v_lshl_add_u32 v6, v7, 5, v6")
        A("v_lshrrev_b32 v7, 1, v5")
        A("v_lshl_add_u32 v6, v7, 4, v6")
        A("s_add_u32 s31, s33, 256")
        A(f"s_mul_i32 s31, s31, {YP_STRIDE}")
        A(f"s_add_u32 s31, s31, {YP_OFF}")
        self.nop(2)
        for cb in range(4):
            A(f"v_cndmask_b32 v{64+4*cb}, v{32+4*cb}, v{34+4*cb}, s[78:79]")
            A(f"v_cndmask_b32 v{66+4*cb}, v{33+4*cb}, v{35+4*cb}, s[78:79]")
            if cb == 3: self.setexec(0x00ff00ff00ff00ff)
            A(f"buffer_store_dwordx4 v[{64+4*cb}:{67+4*cb}], v6, s[16:19], s31 offen offset:{cb*1024} sc1")
        self.setexec(-1)
        A("s_waitcnt vmcnt(0)")
        if self.stamps:
            self.fstamp(16)
            A("v_lshlrev_b32 v6, 2, v0")
            A("s_lshl_b32 s31, s33, 8")
            A(f"s_add_u32 s31, s31, {ST_OFF + 0x120000}")
            A("buffer_store_dword v29, v6, s[16:19], s31 offen")
            A("s_waitcnt vmcnt(0)")
        A("s_mov_b32 s32, 2")
        A("s_branch L_prefetch")

    def worker(self):
        A = self.A; C = self.C
        self.label("L_worker")
        A("s_cmp_eq_u32 s28, 2")
        w0 = self.new("w")
        A(f"s_cbranch_scc0 {w0}")
        A(f"s_cmp_eq_u32 s3, {NWK-1}")
        A("s_cbranch_scc1 L_ffn")
        self.label(w0)
        A("s_cmp_eq_u32 s28, 0")
        A("s_cbranch_scc1 L_wroleQ")
        A("s_mov_b32 s32, 1")
        A("s_branch L_prefetch")

        C("role Q: q strip producer (64 rows per wave)")
        self.label("L_wroleQ")
        self.srd(20, 42, 448 * 8192)
        A("v_lshrrev_b32 v62, 3, v0")
        A("v_lshlrev_b32 v62, 13, v62")
        A("v_and_b32 v1, 7, v0")
        A("v_lshl_add_u32 v62, v1, 4, v62")
        A(f"s_lshl_b32 s30, s3, 19")
        A("s_lshl_b32 s31, s29, 7")
        A("s_add_u32 s30, s30, s31")
        for t in range(8):
            A(f"s_add_u32 s31, s30, {t*8*8192}")
            A(f"buffer_load_dwordx4 v[{192+4*t}:{195+4*t}], v62, s[20:23], s31 offen nt")
        self.masks()
        A("s_barrier")
        A("v_lshrrev_b32 v63, 3, v0")
        A("v_lshlrev_b32 v63, 2, v63")
        A(f"s_lshl_b32 s31, s3, 8")
        A(f"s_add_u32 s31, s31, {L_XD}")
        A("v_add_u32 v63, s31, v63")
        A("s_barrier")
        for t in range(8):
            A(f"ds_read_b32 v{32+t}, v63 offset:{t*32}")
        A("s_waitcnt vmcnt(0) lgkmcnt(0)")
        self.gemv_strip(192, 56, nt=8)
        A("v_lshlrev_b32 v62, 4, v0")
        A("s_lshl_b32 s31, s3, 10")
        A(f"s_add_u32 s31, s31, {L_P}")
        A("v_add_u32 v62, s31, v62")
        self.nop(8)
        A("ds_write_b128 v62, v[56:59]")
        A("s_waitcnt lgkmcnt(0)")
        A("s_barrier")
        A("s_barrier")
        self.label("L_prefetch0")
        A("s_mov_b32 s32, 0")

        C("staggered prefetch of the 3 static items")
        self.label("L_prefetch")
        A("v_and_b32 v2, 15, v0")
        A("v_lshrrev_b32 v3, 4, v0")
        A("v_lshrrev_b32 v4, 2, v2")
        A("v_lshlrev_b32 v4, 9, v4")
        A("v_lshl_add_u32 v4, v3, 6, v4")
        A("v_and_b32 v1, 3, v2")
        A("v_lshl_add_u32 v4, v1, 4, v4")
        A("v_lshlrev_b32 v6, 9, v3")
        A("v_lshl_add_u32 v6, v2, 4, v6")
        A(f"s_mul_i32 s61, s6, {self.RX}")
        A(f"s_mul_i32 s30, s7, {NWK}")
        A("s_add_u32 s61, s61, s30")
        A("s_add_u32 s61, s61, s3")
        A(f"s_add_u32 s70, s61, {4*NWK}")
        A(f"s_add_u32 s71, s61, {8*NWK}")
        seq = [("K", 0, "s61"), ("V", 0, "s61"), ("K", 1, "s70"), ("V", 1, "s70"), ("K", 2, "s71"), ("V", 2, "s71")]
        def pf(n):
            kind, buf, t = seq[n]
            if kind == "K": self.tile_addr(t)
            self.ld_tile(kind, buf)
        first = self.PF0
        for n in range(first): pf(n)
        A("s_cmp_lg_u32 s32, 1")
        w1 = self.new("w")
        A(f"s_cbranch_scc1 {w1}")
        A("s_barrier")
        self.label(w1)
        self.masks()
        self.get_tag()
        A("s_cmp_eq_u32 s32, 2")
        A("s_cbranch_scc1 L_burst")
        for n in range(first, 6):
            A(f"s_waitcnt vmcnt({8*(self.PF-1)})")
            pf(n)
        A("s_branch L_pfdone")
        self.label("L_burst")
        for n in range(first, 6):
            pf(n)
        A(f"s_waitcnt vmcnt({8*self.PF})")
        self.label("L_pfdone")
        self.Qinit = [("K", 2, 2), ("V", 2, 2)][2 - self.PF:]
        A(f"v_mov_b32 v62, {L_QF}")
        sq = self.new("spinq")
        self.label(sq)
        A("ds_read_b32 v31, v62")
        A("s_waitcnt lgkmcnt(0)")
        A("v_readfirstlane_b32 s66, v31")
        self.nop(2)
        A("s_cmp_lg_u32 s66, 0")
        sqd = self.new("spinqd")
        A(f"s_cbranch_scc1 {sqd}")
        A("s_sleep 1")
        A(f"s_branch {sq}")
        self.label(sqd)
        A("v_lshrrev_b32 v62, 3, v2")
        A("v_lshlrev_b32 v62, 9, v62")
        A("v_lshl_add_u32 v62, v3, 6, v62")
        A("v_and_b32 v1, 3, v2")
        A("v_lshl_add_u32 v62, v1, 4, v62")
        A(f"ds_read_b128 v[12:15], v62 offset:{L_Q}")
        A(f"ds_read_b128 v[16:19], v62 offset:{L_Q+256}")
        for k in range(8):
            A(f"v_mov_b32 v{20+k}, 0")
        A("v_mov_b32 v28, 0xff800000")
        A("v_mov_b32 v29, 0xff800000")
        A("v_mov_b32 v30, 0")
        A(f"v_mov_b32 v60, {L_CNT}")
        A("v_mov_b32 v61, 1")
        A("s_mov_b32 s64, -1")
        A("s_mov_b32 s65, 0")
        A("s_waitcnt lgkmcnt(0)")
        if self.stamps:
            A("v_mov_b32 v63, 0")
            A("v_mov_b32 v1, 0")
            A("s_mov_b32 s94, 0")
            A("s_mov_b32 s95, -1")
            A("s_mov_b32 s69, -1")
            self.wstamp()
        rare = []
        drains = []
        Q = list(self.Qinit)
        def wait(kind, item):
            idxs = [i for i, q in enumerate(Q) if q[0] == kind and q[1] == item]
            if not idxs: return
            idx = idxs[0]
            after = len(Q) - idx - 1
            A(f"s_waitcnt vmcnt({8*after})")
            del Q[:idx + 1]
        def process(item, buf, refill, nxt, pending):
            if refill: self.pop_issue()
            wait("K", item)
            self.qk(buf)
            if refill:
                d = self.new("drain")
                drains.append((d, item, buf, list(Q), list(pending)))
                self.pop_resolve(d)
                self.ld_tile("K", buf); Q.append(("K", nxt, buf))
            else:
                self.nop(8)
            self.softmax(rare)
            wait("V", item)
            self.pv(buf)
            if refill:
                self.ld_tile("V", buf); Q.append(("V", nxt, buf))
        RS = self.RS
        if self.ND < NWK:
            A(f"s_cmp_ge_u32 s3, {self.ND}")
            A("s_cbranch_scc1 L_static_only")
        if self.direct:
            assert RS == 3
            Q0 = [("K", 0, 0), ("V", 0, 0), ("K", 1, 1), ("V", 1, 1), ("K", 2, 2), ("V", 2, 2)]
        else:
            nxt = 3
            pend = [(1, 1), (2, 2)]
            for n in range(3):
                rf = n < RS
                pending = [(it, b) for (it, b) in pend if it > n]
                pending += [(3 + k, k) for k in range(min(n, RS))]
                process(n, n, rf, nxt, pending)
                if rf: nxt += 1
            Q0 = [(k, it - 3, b) for (k, it, b) in Q]
        self.label("L_loop")
        Q[:] = list(Q0)
        for n in range(RS):
            pending = [(m, m) for m in range(n + 1, RS)] + [(RS + k, k) for k in range(n)]
            process(n, n, True, n + RS, pending)
        Q1 = [(k, it - RS, b) for (k, it, b) in Q]
        assert Q1 == Q0, (Q0, Q1)
        A("s_branch L_loop")
        for (d, item, buf, q, pending) in drains:
            self.label(d)
            Q[:] = list(q)
            self.nop(8)
            self.softmax(rare)
            wait("V", item)
            self.pv(buf)
            for (it, b) in pending:
                wait("K", it)
                self.qk(b)
                self.nop(8)
                self.softmax(rare)
                wait("V", it)
                self.pv(b)
            assert not Q, Q
            A("s_branch L_wfin")
        if self.ND < NWK:
            self.label("L_static_only")
            Q[:] = list(self.Qinit)
            for n in range(3):
                process(n, n, False, None, [])
            A("s_branch L_wfin")
        for (r, b) in rare:
            self.rare_block(r, b)
        self.label("L_wfin")
        if self.stamps:
            A("v_lshlrev_b32 v62, 2, v0")
            A("s_lshl_b32 s31, s2, 3")
            A("s_add_u32 s31, s31, s3")
            A("s_lshl_b32 s31, s31, 8")
            A(f"s_add_u32 s31, s31, {ST_OFF + 0x10000}")
            A("buffer_store_dword v63, v62, s[16:19], s31 offen")
            A("s_add_u32 s31, s31, 0x80000")
            A("buffer_store_dword v1, v62, s[16:19], s31 offen")
        self.allreduce("add", "v30", "v31", steps=("p16", "p32"))
        A("v_lshrrev_b32 v62, 1, v3")
        A("v_lshlrev_b32 v62, 10, v62")
        A("v_lshl_add_u32 v62, v2, 5, v62")
        A("v_and_b32 v1, 1, v3")
        A("v_lshl_add_u32 v62, v1, 4, v62")
        A(f"s_mul_i32 s31, s3, 2304")
        A(f"s_add_u32 s31, s31, {L_M}")
        A("v_add_u32 v62, s31, v62")
        self.nop(4)
        A("ds_write_b128 v62, v[20:23]")
        A("ds_write_b128 v62, v[24:27] offset:512")
        A("v_lshrrev_b32 v63, 3, v0")
        A("v_lshlrev_b32 v63, 3, v63")
        A("v_add_u32 v63, s31, v63")
        A("v_mov_b32 v29, v30")
        self.setexec(0x101)
        A("ds_write_b64 v63, v[28:29] offset:2048")
        self.setexec(-1)
        A("s_waitcnt lgkmcnt(0)")
        A(f"s_mul_i32 s31, s2, {REC_STRIDE}")
        A(f"s_add_u32 s31, s31, {REC_OFF}")
        A(f"v_mov_b32 v2, {L_M + 2048}")
        A("v_lshlrev_b32 v3, 4, v0")
        A("v_lshlrev_b32 v4, 3, v0")
        A(f"v_mov_b32 v33, {TAG}"); A(f"v_mov_b32 v35, {TAG}")
        A("s_lshl_b32 s30, s3, 9")
        A("v_add_u32 v4, s30, v4")
        A("s_lshl_b32 s30, s3, 10")
        A("s_add_u32 s30, s30, s31")
        A("s_lshr_b32 s66, s3, 1")
        A("s_lshl_b32 s66, s66, 3")
        A("v_add_u32 v5, s66, v2")
        A("v_and_b32 v6, 1, v0")
        A("v_lshlrev_b32 v6, 3, v6")
        A("v_add_u32 v6, v6, v2")
        A("s_barrier")
        A("s_cmp_eq_u32 s3, 5")
        A("s_cbranch_scc1 L_wffn")
        A("s_cmp_gt_u32 s3, 4")
        A("s_cbranch_scc1 L_end")
        A("s_cmp_eq_u32 s3, 4")
        A("s_cbranch_scc1 L_whead")
        C("record quarter k = wave: elements h*256 + half*128 + 2*lane + {0,1}")
        for w in range(NWK):
            A(f"ds_read_b64 v[{64+2*w}:{65+2*w}], v5 offset:{w*2304}")
        for w in range(NWK):
            A(f"ds_read_b64 v[{80+2*w}:{81+2*w}], v4 offset:{L_M + w*2304}")
        A(f"s_waitcnt lgkmcnt({NWK})")
        A("v_max_f32 v36, v64, v66")
        for w in range(2, NWK):
            A(f"v_max_f32 v36, v36, v{64+2*w}")
        for w in range(NWK):
            A(f"v_sub_f32 v{64+2*w}, v{64+2*w}, v36")
        for w in range(NWK):
            A(f"v_mul_f32 v{64+2*w}, s60, v{64+2*w}")
        for w in range(NWK):
            A(f"v_exp_f32 v{64+2*w}, v{64+2*w}")
        A("s_waitcnt lgkmcnt(0)")
        A("v_mul_f32 v32, v64, v80"); A("v_mul_f32 v34, v64, v81")
        for w in range(1, NWK):
            A(f"v_fmac_f32 v32, v{64+2*w}, v{80+2*w}")
            A(f"v_fmac_f32 v34, v{64+2*w}, v{81+2*w}")
        A("buffer_store_dwordx4 v[32:35], v3, s[16:19], s30 offen sc1")
        if self.stamps and self.ackst:
            A("s_memrealtime s[90:91]")
            A("s_waitcnt vmcnt(0)")
            A("s_memrealtime s[92:93]")
            A("s_waitcnt lgkmcnt(0)")
            A("v_mov_b32 v36, s90"); A("v_mov_b32 v37, s92")
            A("s_lshl_b32 s66, s2, 5")
            A("s_lshl_b32 s67, s3, 3")
            A("s_add_u32 s66, s66, s67")
            A(f"s_add_u32 s66, s66, {ST_OFF + 0x110000}")
            A("v_mov_b32 v38, 0")
            self.setexec(1)
            A("buffer_store_dwordx2 v[36:37], v38, s[16:19], s66 offen")
            self.setexec(-1)
        A("s_cmp_ge_u32 s89, 112")
        A("s_cbranch_scc1 L_end")
        A("s_branch L_hop2")
        self.label("L_whead")
        C("header line {M, tag, L, tag} x 2 heads (lane parity = head), written as one full line")
        for w in range(NWK):
            A(f"ds_read_b64 v[{64+2*w}:{65+2*w}], v6 offset:{w*2304}")
        A("s_waitcnt lgkmcnt(0)")
        A("v_max_f32 v32, v64, v66")
        for w in range(2, NWK):
            A(f"v_max_f32 v32, v32, v{64+2*w}")
        for w in range(NWK):
            A(f"v_sub_f32 v{64+2*w}, v{64+2*w}, v32")
        for w in range(NWK):
            A(f"v_mul_f32 v{64+2*w}, s60, v{64+2*w}")
        for w in range(NWK):
            A(f"v_exp_f32 v{64+2*w}, v{64+2*w}")
        A("s_nop 0")
        A("v_mul_f32 v34, v64, v65")
        for w in range(1, NWK):
            A(f"v_fmac_f32 v34, v{64+2*w}, v{65+2*w}")
        A("s_add_u32 s30, s31, 4096")
        self.setexec(0xff)
        A("buffer_store_dwordx4 v[32:35], v3, s[16:19], s30 offen sc1")
        A("s_branch L_end")
        self.label("L_wffn")
        A("s_cmp_ge_u32 s89, 112")
        A("s_cbranch_scc1 L_end")
        self.ffn_part()
        A("s_waitcnt lgkmcnt(0)")
        A("s_barrier")
        A("s_barrier")
        A("s_branch L_end")
        self.label("L_hop2")
        A("s_barrier")
        C("hop 2: thread t = w*64+lane polls ypart[t][4b..4b+3] granules")
        A("s_lshl_b32 s31, s3, 6")
        A("v_add_u32 v1, s31, v0")
        A(f"v_mul_u32_u24 v62, {YP_STRIDE}, v1")
        A("s_lshl_b32 s31, s89, 5")
        A(f"s_add_u32 s31, s31, {YP_OFF}")
        if self.pipe:
            p = self.new("poll2"); g0 = self.new("got0"); g1 = self.new("got1"); cont = self.new("cont2")
            PS = [64, 80]
            def issue(P):
                A(f"buffer_load_dwordx4 v[{P}:{P+3}], v62, s[16:19], s31 offen sc1")
                A(f"buffer_load_dwordx4 v[{P+4}:{P+7}], v62, s[16:19], s31 offen offset:16 sc1")
            issue(PS[0])
            self.label(p)
            for (cur, oth, gl) in ((0, 1, g0), (1, 0, g1)):
                issue(PS[oth])
                A("s_waitcnt vmcnt(2)")
                self.check_tags([f"v{PS[cur]+1+2*k}" for k in range(4)], "v40")
                A(f"s_cbranch_vccz {gl}")
            A(f"s_branch {p}")
            for (cur, gl) in ((1, g1), (0, g0)):
                self.label(gl)
                P = PS[cur]
                for k in range(4):
                    A(f"v_mov_b32 v{32+2*k}, v{P+2*k}")
                if cur == 1: A(f"s_branch {cont}")
            self.label(cont)
        else:
            p = self.new("poll2"); pd = self.new("poll2d")
            self.label(p)
            A("buffer_load_dwordx4 v[32:35], v62, s[16:19], s31 offen sc1")
            A("buffer_load_dwordx4 v[36:39], v62, s[16:19], s31 offen offset:16 sc1")
            A("s_waitcnt vmcnt(0)")
            self.check_tags(["v33", "v35", "v37", "v39"], "v40")
            A(f"s_cbranch_vccz {pd}")
            if self.masked: A("s_mov_b64 exec, vcc")
            if self.sleep2: A(f"s_sleep {self.sleep2}")
            A(f"s_branch {p}")
            self.label(pd)
            self.setexec(-1)
        self.allreduce_multi("add", ["v32", "v34", "v36", "v38"], ["v40", "v41", "v42", "v43"], ("q1", "q2", "hm", "rm", "p16", "p32"))
        A("v_mov_b32 v33, v34"); A("v_mov_b32 v34, v36"); A("v_mov_b32 v35, v38")
        A("s_lshl_b32 s31, s3, 4")
        A(f"s_add_u32 s31, s31, {L_R}")
        A("v_mov_b32 v62, s31")
        self.setexec(1)
        A("ds_write_b128 v62, v[32:35]")
        self.setexec(-1)
        A("s_waitcnt lgkmcnt(0)")
        A("s_barrier")
        A("s_branch L_end")

    def check_tags(self, regs, tmp, tmp2="v63"):
        A = self.A
        A(f"v_xor_b32 {tmp}, {TAG}, {regs[0]}")
        for r in regs[1:]:
            A(f"v_xor_b32 {tmp2}, {TAG}, {r}")
            A(f"v_or_b32 {tmp}, {tmp}, {tmp2}")
        A(f"v_cmp_ne_u32 vcc, 0, {tmp}")
        self.nop(1)

    def ffn_part(self):
        A = self.A
        self.C("FFN part of hop 2 (wg < 112)")
        A(f"v_mul_u32_u24 v64, {YP_STRIDE}, v0")
        A("s_lshl_b32 s31, s89, 5")
        A(f"s_add_u32 s31, s31, {YP_OFF + 256*YP_STRIDE}")
        p = self.new("pollf"); pd = self.new("pollfd")
        self.setexec(0xfffffff)
        self.label(p)
        A("buffer_load_dwordx4 v[68:71], v64, s[16:19], s31 offen sc1")
        A("buffer_load_dwordx4 v[72:75], v64, s[16:19], s31 offen offset:16 sc1")
        A("s_waitcnt vmcnt(0)")
        self.check_tags(["v69", "v71", "v73", "v75"], "v65", tmp2="v66")
        A(f"s_cbranch_vccz {pd}")
        A("s_sleep 8")
        if not self.allN: A(f"s_branch {p}")
        self.label(pd)
        self.setexec(-1)
        A("v_cmp_gt_u32 vcc, 28, v0")
        self.nop(2)
        for k in range(4):
            A(f"v_cndmask_b32 v{68+2*k}, 0, v{68+2*k}, vcc")
        self.srd(20, 36, 896)
        A("s_lshl_b32 s31, s89, 3")
        A("v_mov_b32 v64, 0")
        A("buffer_load_dwordx2 v[80:81], v64, s[20:23], s31 offen nt")
        self.allreduce_multi("add", ["v68", "v70", "v72", "v74"], ["v65", "v66", "v67", "v76"], ("q1", "q2", "hm", "rm", "p16", "p32"))
        for k in range(4):
            self.bf16r(f"v{68+2*k}")
        A("v_mov_b32 v76, v68"); A("v_mov_b32 v77, v70"); A("v_mov_b32 v78, v72"); A("v_mov_b32 v79, v74")
        A(f"v_mov_b32 v64, {L_FX}")
        A("s_waitcnt vmcnt(0)")
        self.setexec(1)
        A("ds_write_b128 v64, v[76:79]")
        A("ds_write_b64 v64, v[80:81] offset:16")
        self.setexec(-1)

    def control(self):
        A = self.A; C = self.C
        self.label("L_control")
        self.stamp(0)
        self.srd(20, 36, 896)
        A("v_lshlrev_b32 v1, 4, v0")
        A("s_cmp_lg_u32 s28, 0")
        x0 = self.new("x")
        A(f"s_cbranch_scc1 {x0}")
        A("buffer_load_dwordx4 v[8:11], v1, s[20:23], 0 offen nt")
        self.label(x0)
        A("v_mov_b32 v4, -1"); A("v_mov_b32 v5, -1"); A("v_mov_b32 v6, -1"); A("v_mov_b32 v7, -1")
        for k in range(TBL_KB):
            A(f"ds_write_b128 v1, v[4:7] offset:{L_TBL + k*1024}")
        A("v_mov_b32 v2, 0")
        A(f"v_mov_b32 v3, {1 if self.noq else 0}")
        A(f"ds_write_b64 v2, v[2:3] offset:{L_CNT}")
        A("s_waitcnt lgkmcnt(0)")
        A("s_barrier")
        self.get_tag()
        A("s_cmp_lg_u32 s28, 0")
        A("s_cbranch_scc1 L_cpollq")
        C("role Q: producer 8g zeroes the ticket counters of head g")
        A("s_and_b32 s30, s29, 7")
        A("s_cmp_lg_u32 s30, 0")
        A("s_cbranch_scc1 L_cln")
        self.setexec(0x1ff)
        A("v_lshlrev_b32 v3, 8, v0")
        A("s_lshl_b32 s30, s29, 9")
        A(f"s_add_u32 s31, s30, {CTR_OFF}")
        A("buffer_store_dword v2, v3, s[16:19], s31 offen sc1")
        self.setexec(-1)
        self.label("L_cln")
        A("s_waitcnt vmcnt(0)")
        self.ln()
        A("s_barrier")
        self.stamp(1)
        A("v_and_b32 v2, 7, v0")
        A("v_bfe_u32 v3, v0, 3, 1")
        A("v_lshl_add_u32 v2, v3, 4, v2")
        A("v_lshlrev_b32 v2, 4, v2")
        A(f"v_mov_b32 v17, {TAG}")
        A(f"v_mov_b32 v19, {TAG}")
        A("v_and_b32 v4, 7, v0")
        A("v_lshlrev_b32 v4, 5, v4")
        A("v_lshl_add_u32 v4, v3, 4, v4")
        A("s_lshl_b32 s31, s29, 8")
        A(f"s_add_u32 s31, s31, {Q_OFF}")
        A("s_barrier")
        for w in range(NWK):
            A(f"ds_read_b128 v[{32+8*w}:{35+8*w}], v2 offset:{L_P + w*1024}")
            A(f"ds_read_b128 v[{36+8*w}:{39+8*w}], v2 offset:{L_P + w*1024 + 640}")
        A("s_waitcnt lgkmcnt(0)")
        for k in range(4):
            A(f"v_add_f32 v{12+k}, v{32+k}, v{36+k}")
        for w in range(1, NWK):
            for k in range(4):
                A(f"v_add_f32 v{32+8*w+k}, v{32+8*w+k}, v{36+8*w+k}")
            for k in range(4):
                A(f"v_add_f32 v{12+k}, v{12+k}, v{32+8*w+k}")
        A("v_cvt_pk_bf16_f32 v16, v12, v13")
        A("v_cvt_pk_bf16_f32 v18, v14, v15")
        self.setexec(0xffff)
        A("buffer_store_dwordx4 v[16:19], v4, s[16:19], s31 offen sc1")
        self.setexec(-1)
        A("s_barrier")
        self.stamp(2)
        C("poll q granules of this head group")
        self.label("L_cpollq")
        A("v_lshlrev_b32 v2, 4, v0")
        A("s_lshl_b32 s31, s4, 11")
        A(f"s_add_u32 s31, s31, {Q_OFF}")
        p = self.new("pollq"); pd = self.new("pollqd")
        self.label(p)
        A("buffer_load_dwordx4 v[4:7], v2, s[16:19], s31 offen sc1")
        A("buffer_load_dwordx4 v[8:11], v2, s[16:19], s31 offen offset:1024 sc1")
        A("s_waitcnt vmcnt(0)")
        self.check_tags(["v5", "v7", "v9", "v11"], "v12")
        A(f"s_cbranch_vccz {pd}")
        if not self.allN: A(f"s_branch {p}")
        self.label(pd)
        self.stamp(3)
        A("v_mov_b32 v5, v6")
        A("v_mov_b32 v9, v10")
        A("v_lshlrev_b32 v3, 3, v0")
        A(f"ds_write_b64 v3, v[4:5] offset:{L_Q}")
        A(f"ds_write_b64 v3, v[8:9] offset:{L_Q+512}")
        A("v_mov_b32 v4, 1")
        A(f"v_mov_b32 v5, {L_QF}")
        A("s_waitcnt lgkmcnt(0)")
        A("ds_write_b32 v5, v4")
        self.stamp(4)
        if self.warm == 2:
            C("touch this workgroup's hand-off lines early with loads")
            A("v_lshlrev_b32 v2, 4, v0")
            A(f"s_mul_i32 s31, s2, {REC_STRIDE}")
            A(f"s_add_u32 s31, s31, {REC_OFF}")
            for k in range(4):
                A(f"buffer_load_dwordx4 v[{192+4*k}:{195+4*k}], v2, s[16:19], s31 offen offset:{k*1024} sc1")
            A("s_add_u32 s31, s31, 4096")
            self.setexec(0xff)
            A("buffer_load_dwordx4 v[208:211], v2, s[16:19], s31 offen sc1")
            self.setexec(-1)
            A(f"s_mul_i32 s31, s2, {YP_STRIDE}")
            A(f"s_add_u32 s31, s31, {YP_OFF}")
            for k in range(3):
                A(f"buffer_load_dwordx4 v[{212+4*k}:{215+4*k}], v2, s[16:19], s31 offen offset:{k*1024} sc1")
            self.setexec(0xffffffff)
            A(f"buffer_load_dwordx4 v[224:227], v2, s[16:19], s31 offen offset:3072 sc1")
            self.setexec(-1)
        if self.warm == 1:
            C("touch this workgroup's hand-off lines early (stale tag) so the final stores / polls find them in the memory-side cache")
            A("v_mov_b32 v4, 0"); A("v_mov_b32 v5, s35"); A("v_mov_b32 v6, 0"); A("v_mov_b32 v7, s35")
            A("v_lshlrev_b32 v2, 4, v0")
            A(f"s_mul_i32 s31, s2, {REC_STRIDE}")
            A(f"s_add_u32 s31, s31, {REC_OFF}")
            for k in range(4):
                A(f"buffer_store_dwordx4 v[4:7], v2, s[16:19], s31 offen offset:{k*1024} sc1")
            A("s_add_u32 s31, s31, 4096")
            self.setexec(3)
            A("buffer_store_dwordx4 v[4:7], v2, s[16:19], s31 offen sc1")
            self.setexec(-1)
            A(f"s_mul_i32 s31, s2, {YP_STRIDE}")
            A(f"s_add_u32 s31, s31, {YP_OFF}")
            for k in range(3):
                A(f"buffer_store_dwordx4 v[4:7], v2, s[16:19], s31 offen offset:{k*1024} sc1")
            self.setexec(0xffffffff)
            A(f"buffer_store_dwordx4 v[4:7], v2, s[16:19], s31 offen offset:3072 sc1")
            self.setexec(-1)
        if not self.latewo:
            self.srd(20, 44, 4096 * 896)
            A("v_and_b32 v2, 15, v0")
            A("v_lshrrev_b32 v3, 4, v0")
            A("v_mul_u32_u24 v4, 896, v3")
            A("v_lshl_add_u32 v4, v2, 4, v4")
            A("s_lshl_b32 s30, s2, 4")
            A("s_mul_i32 s30, s30, 896")
            for t in range(4):
                A(f"s_add_u32 s31, s30, {t*4*896}")
                for cb in range(4):
                    b = 128 + (t * 4 + cb) * 4
                    A(f"buffer_load_dwordx4 v[{b}:{b+3}], v4, s[20:23], s31 offen offset:{cb*256} nt")
        self.masks()
        C("ticket loop: home range -> common pool of the head -> steal from other ranges")
        RX = self.RX
        DX = RX - SPR
        DC = 4096 - 8 * RX
        A("s_mov_b32 s66, 0")
        A("s_mov_b32 s67, s6")
        A(f"s_mov_b32 s77, {DX}")
        A(f"s_mul_i32 s80, s6, {RX}")
        A(f"s_add_u32 s80, s80, {SPR}")
        A("s_mov_b32 s79, 0")
        A("s_mov_b32 s75, 0")
        A("s_mov_b32 s78, 4")
        A(f"s_mov_b32 s76, {self.LVL}")
        A(f"v_mov_b32 v13, {L_CNT}")
        A("v_lshlrev_b32 v17, 8, v0")
        A("s_lshl_b32 s68, s4, 12")
        A(f"s_add_u32 s68, s68, {CTR_OFF}")
        self.label("L_floop")
        self.label("L_floop1")
        A("ds_read_b32 v14, v13")
        A("s_waitcnt lgkmcnt(0)")
        A("v_readfirstlane_b32 s70, v14")
        self.nop(2)
        A("s_sub_i32 s71, s66, s70")
        A("s_cmp_le_i32 s71, s76")
        A("s_cbranch_scc1 L_fgo0")
        A("s_sleep 2")
        A("s_branch L_floop1")
        self.label("L_fgo0")
        A("s_cmp_lg_u32 s75, 0")
        A("s_cbranch_scc1 L_fnext")
        self.label("L_fgo")
        A("s_lshl_b32 s71, s67, 8")
        A("v_mov_b32 v15, s71")
        A("v_mov_b32 v12, s78")
        self.setexec(1)
        A("buffer_atomic_add v12, v15, s[16:19], s68 offen sc0 sc1")
        if self.pairg:
            A("s_cmp_eq_u32 s79, 0")
            A("s_cbranch_scc1 L_fnog")
            self.setexec(0xff)
            A("buffer_load_dword v16, v17, s[16:19], s68 offen sc1")
            self.label("L_fnog")
        A("s_waitcnt vmcnt(0)")
        self.setexec(1)
        A("v_readfirstlane_b32 s70, v12")
        self.setexec(-1)
        self.nop(2)
        A("s_cmp_lt_u32 s70, s77")
        A("s_cbranch_scc1 L_fgot")
        if self.pairg:
            A("s_cmp_eq_u32 s79, 0")
            A("s_cbranch_scc1 L_fnext")
            A("v_mov_b32 v14, v16")
            A("s_mov_b32 s75, 0")
            A("s_branch L_fpick")
        self.label("L_fnext")
        A("s_mov_b32 s75, 0")
        A("s_cmp_lg_u32 s79, 0")
        A("s_cbranch_scc1 L_fsteal")
        if DC > 0:
            A("s_mov_b32 s79, 1")
            A("s_mov_b32 s67, 8")
            A(f"s_mov_b32 s77, {DC}")
            A(f"s_mov_b32 s80, {8*RX}")
            A("s_branch L_fgo")
        self.label("L_fsteal")
        A("s_mov_b32 s79, 2")
        A(f"s_mov_b32 s78, {self.NE}")
        A(f"s_mov_b32 s76, {self.LVLE}")
        A("v_lshlrev_b32 v15, 8, v0")
        self.setexec(0xff)
        A("buffer_load_dword v14, v15, s[16:19], s68 offen sc1")
        A("s_waitcnt vmcnt(0)")
        self.label("L_fpick")
        A("s_mov_b32 s79, 2")
        A(f"s_mov_b32 s78, {self.NE}")
        A(f"s_mov_b32 s76, {self.LVLE}")
        self.setexec(0xff)
        A(f"v_cmp_gt_u32 vcc, {DX}, v14")
        self.setexec(-1)
        self.nop(2)
        A("s_and_b32 s71, vcc_lo, 0xff")
        A("s_cmp_eq_u32 s71, 0")
        A("s_cbranch_scc1 L_fend")
        A("s_lshl_b32 s73, s71, 8")
        A("s_or_b32 s73, s73, s71")
        A("s_add_u32 s74, s6, 1")
        A("s_lshr_b32 s73, s73, s74")
        A("s_ff1_i32_b32 s73, s73")
        A("s_add_u32 s67, s74, s73")
        A("s_and_b32 s67, s67, 7")
        A(f"s_mov_b32 s77, {DX}")
        A(f"s_mul_i32 s80, s67, {RX}")
        A(f"s_add_u32 s80, s80, {SPR}")
        A("s_branch L_fgo")
        self.label("L_fgot")
        A("s_sub_u32 s71, s77, s70")
        A("s_min_u32 s71, s71, s78")
        A("s_add_u32 s73, s80, s70")
        A("v_add_u32 v14, s73, v0")
        A("v_add_u32 v15, s66, v0")
        A("v_lshlrev_b32 v15, 2, v15")
        A("s_lshl_b32 s74, 1, s71")
        A("s_sub_u32 s74, s74, 1")
        A("s_mov_b32 exec_lo, s74")
        A("s_mov_b32 exec_hi, 0")
        A(f"ds_write_b32 v15, v14 offset:{L_TBL}")
        self.setexec(-1)
        A("s_add_u32 s66, s66, s71")
        A("s_add_u32 s70, s70, s71")
        A("s_cmp_ge_u32 s70, s77")
        A("s_cselect_b32 s75, 1, 0")
        A("s_cmp_lg_u32 s79, 1")
        A("s_cbranch_scc1 L_floop")
        A(f"s_cmp_lt_u32 s70, {DC - self.X}")
        A("s_cbranch_scc1 L_floop")
        A(f"s_mov_b32 s78, {self.NE}")
        A(f"s_mov_b32 s76, {self.LVLE}")
        A("s_branch L_floop")
        self.label("L_fend")
        A("v_mov_b32 v14, 4096")
        A("v_add_u32 v15, s66, v0")
        A("v_lshlrev_b32 v15, 2, v15")
        self.setexec(0xff)
        A(f"ds_write_b32 v15, v14 offset:{L_TBL}")
        self.setexec(-1)
        self.stamp(5)
        if self.latewo:
            self.srd(20, 44, 4096 * 896)
            A("v_and_b32 v2, 15, v0")
            A("v_lshrrev_b32 v3, 4, v0")
            A("v_mul_u32_u24 v4, 896, v3")
            A("v_lshl_add_u32 v4, v2, 4, v4")
            A("s_lshl_b32 s30, s2, 4")
            A("s_mul_i32 s30, s30, 896")
            for t in range(4):
                A(f"s_add_u32 s31, s30, {t*4*896}")
                for cb in range(4):
                    b = 128 + (t * 4 + cb) * 4
                    A(f"buffer_load_dwordx4 v[{b}:{b+3}], v4, s[20:23], s31 offen offset:{cb*256} nt")
        self.label("L_cbt1")
        C("hop 1 addresses: lane l: rec 8n + (l>>3), piece l&7 (2 granules)")
        A("v_lshrrev_b32 v96, 3, v0")
        A("v_lshlrev_b32 v96, 13, v96")
        A("v_and_b32 v3, 7, v0")
        A("v_lshl_add_u32 v97, v3, 4, v96")
        A("s_lshl_b32 s30, s4, 18")
        A(f"s_add_u32 s30, s30, {REC_OFF}")
        A("s_lshl_b32 s81, s5, 7")
        A("s_add_u32 s81, s81, s30")
        A("s_lshr_b32 s85, s5, 4")
        A("s_lshl_b32 s85, s85, 4")
        A("s_add_u32 s85, s85, s30")
        A("s_add_u32 s85, s85, 4096")
        for n in range(1, 4):
            A(f"s_add_u32 s{81+n}, s81, {n*0x10000}")
            A(f"s_add_u32 s{85+n}, s85, {n*0x10000}")
        A("s_waitcnt lgkmcnt(0)")
        A("s_barrier")
        self.stamp(6)
        self.stamp(7)
        PS = [192, 224]
        def issue(P):
            for n in range(4):
                A(f"buffer_load_dwordx4 v[{P+4*n}:{P+3+4*n}], v97, s[16:19], s{81+n} offen sc1")
                A(f"buffer_load_dwordx4 v[{P+16+4*n}:{P+19+4*n}], v96, s[16:19], s{85+n} offen sc1")
        if self.pipe:
            p = self.new("poll1"); g0 = self.new("got0"); g1 = self.new("got1"); cont = self.new("cont1")
            if self.stamps: A("s_mov_b32 s93, 0")
            issue(PS[0])
            self.label(p)
            for (cur, oth, gl) in ((0, 1, g0), (1, 0, g1)):
                issue(PS[oth])
                A("s_waitcnt vmcnt(8)")
                if self.stamps:
                    A("s_add_u32 s93, s93, 1")
                    A("s_memrealtime s[90:91]")
                    A("s_waitcnt lgkmcnt(0)")
                    A("s_min_u32 s92, s93, 30")
                    A("s_add_u32 s92, s92, 31")
                    A("s_mov_b32 m0, s92")
                    A("s_nop 0")
                    A("v_writelane_b32 v127, s90, m0")
                self.check_tags([f"v{PS[cur]+1+2*k}" for k in range(16)], "v12")
                A(f"s_cbranch_vccz {gl}")
            A(f"s_branch {p}")
            for (cur, gl) in ((1, g1), (0, g0)):
                self.label(gl)
                P = PS[cur]
                for n in range(4):
                    A(f"v_mov_b32 v{32+4*n}, v{P+4*n}")
                    A(f"v_mov_b32 v{34+4*n}, v{P+2+4*n}")
                    A(f"v_mov_b32 v{64+4*n}, v{P+16+4*n}")
                    A(f"v_mov_b32 v{66+4*n}, v{P+18+4*n}")
                if cur == 1: A(f"s_branch {cont}")
            self.label(cont)
        else:
            p = self.new("poll1"); pd = self.new("poll1d")
            if self.stamps: A("s_mov_b32 s93, 0")
            if self.sleep0: A(f"s_sleep {self.sleep0}")
            self.label(p)
            for n in range(4):
                A(f"buffer_load_dwordx4 v[{32+4*n}:{35+4*n}], v97, s[16:19], s{81+n} offen sc1")
                A(f"buffer_load_dwordx4 v[{64+4*n}:{67+4*n}], v96, s[16:19], s{85+n} offen sc1")
            A("s_waitcnt vmcnt(0)")
            if self.stamps:
                A("s_add_u32 s93, s93, 1")
                A("s_memrealtime s[90:91]")
                A("s_waitcnt lgkmcnt(0)")
                A("s_min_u32 s92, s93, 30")
                A("s_add_u32 s92, s92, 31")
                A("s_mov_b32 m0, s92")
                A("s_nop 0")
                A("v_writelane_b32 v127, s90, m0")
            self.check_tags([f"v{33+2*k}" for k in range(8)] + [f"v{65+2*k}" for k in range(8)], "v12")
            A(f"s_cbranch_vccz {pd}")
            if self.masked: A("s_mov_b64 exec, vcc")
            if self.sleep: A(f"s_sleep {self.sleep}")
            A(f"s_branch {p}")
            self.label(pd)
            self.setexec(-1)
        self.stamp(8)
        if self.stamps: A("v_writelane_b32 v127, s93, 30")
        A("v_max3_f32 v48, v64, v68, v72")
        A("v_max_f32 v48, v48, v76")
        self.allreduce("max", "v48", "v49", steps=("ror8", "p16", "p32"))
        for n in range(4):
            A(f"v_sub_f32 v{64+4*n}, v{64+4*n}, v48")
            A(f"v_mul_f32 v{64+4*n}, s60, v{64+4*n}")
            A(f"v_exp_f32 v{64+4*n}, v{64+4*n}")
        A("s_nop 0")
        A("v_mul_f32 v50, v64, v66"); A("v_mul_f32 v51, v64, v32"); A("v_mul_f32 v52, v64, v34")
        for n in range(1, 4):
            A(f"v_fmac_f32 v50, v{64+4*n}, v{66+4*n}")
            A(f"v_fmac_f32 v51, v{64+4*n}, v{32+4*n}")
            A(f"v_fmac_f32 v52, v{64+4*n}, v{34+4*n}")
        self.allreduce_multi("add", ["v50", "v51", "v52"], ["v53", "v54", "v55"], ("ror8", "p16", "p32"))
        A("v_rcp_f32 v53, v50")
        A("s_nop 0")
        for r in ("v51", "v52"):
            A(f"v_mul_f32 v54, {r}, v53")
            A(f"v_fma_f32 v55, -v54, v50, {r}")
            A(f"v_fma_f32 {r}, v55, v53, v54")
        A("v_lshrrev_b32 v3, 4, v0")
        A("v_and_b32 v5, 1, v3")
        A("v_cmp_eq_u32 vcc, 1, v5"); self.nop(2)
        A("v_cndmask_b32 v51, v51, v52, vcc")
        A("v_cvt_pk_bf16_f32 v51, v51, v51")
        self.nop(2)
        for t in range(4):
            A(f"v_mov_b32_dpp v{40+t}, v51 row_newbcast:{2*t} row_mask:0x3 bank_mask:0xf")
            A(f"v_mov_b32_dpp v{40+t}, v51 row_newbcast:{2*t+1} row_mask:0xc bank_mask:0xf")
        for cb in range(4):
            A(f"v_mov_b32 v{81+4*cb}, {TAG}"); A(f"v_mov_b32 v{83+4*cb}, {TAG}")
        A("v_cmp_lt_u32 s[78:79], 31, v0")
        for t in range(4):
            a = 44 + 4 * (t & 1)
            for k in range(4):
                A(f"v_and_b32 v{a+k}, v{8+k}, v{40+t}")
            self.nop(2)
            for cb in range(4):
                b = 128 + (t * 4 + cb) * 4
                src = "0" if t == 0 else f"v[{64+4*cb}:{67+4*cb}]"
                A(f"v_mfma_f32_16x16x32_bf16 v[{64+4*cb}:{67+4*cb}], v[{a}:{a+3}], v[{b}:{b+3}], {src}")
        A("v_and_b32 v2, 15, v0")
        A("v_lshlrev_b32 v4, 6, v2")
        A("v_and_b32 v5, 1, v3")
        A("v_lshl_add_u32 v4, v5, 5, v4")
        A("v_lshrrev_b32 v5, 1, v3")
        A("v_lshl_add_u32 v4, v5, 4, v4")
        A(f"s_mul_i32 s31, s2, {YP_STRIDE}")
        A(f"s_add_u32 s31, s31, {YP_OFF}")
        self.nop(2)
        for cb in range(4):
            A(f"v_cndmask_b32 v{80+4*cb}, v{64+4*cb}, v{66+4*cb}, s[78:79]")
            A(f"v_cndmask_b32 v{82+4*cb}, v{65+4*cb}, v{67+4*cb}, s[78:79]")
            if cb == 3: self.setexec(0x00ff00ff00ff00ff)
            A(f"buffer_store_dwordx4 v[{80+4*cb}:{83+4*cb}], v4, s[16:19], s31 offen offset:{cb*1024} sc1")
        self.setexec(-1)
        self.stamp(9)
        if self.stamps and self.ackst:
            A("s_waitcnt vmcnt(0)")
            self.stamp(12)
        A("s_cmp_ge_u32 s89, 112")
        A("s_cbranch_scc1 L_cend")
        A("s_barrier")
        self.srd(20, 54, 896)
        A(f"v_mov_b32 v2, {L_R}")
        A("s_barrier")
        A(f"ds_read_b128 v[112:115], v2 offset:{L_FX - L_R}")
        A(f"ds_read_b64 v[120:121], v2 offset:{L_FX - L_R + 16}")
        for w in range(4):
            A(f"ds_read_b128 v[{32+4*w}:{35+4*w}], v2 offset:{w*16}")
        A("s_waitcnt lgkmcnt(0)")
        A("v_lshlrev_b32 v48, 16, v120"); A("v_and_b32 v49, 0xffff0000, v120")
        A("v_lshlrev_b32 v50, 16, v121"); A("v_and_b32 v51, 0xffff0000, v121")
        for k in range(4):
            A(f"v_add_f32 v{32+k}, v{32+k}, v{36+k}")
            A(f"v_add_f32 v{40+k}, v{40+k}, v{44+k}")
            A(f"v_add_f32 v{32+k}, v{32+k}, v{40+k}")
            self.bf16r(f"v{32+k}")
            A(f"v_add_f32 v{32+k}, v{48+k}, v{32+k}")
            self.bf16r(f"v{32+k}")
            A(f"v_add_f32 v{32+k}, v{32+k}, v{112+k}")
        A("v_cvt_pk_bf16_f32 v32, v32, v33")
        A("v_cvt_pk_bf16_f32 v33, v34, v35")
        A("s_lshl_b32 s31, s89, 3")
        A("v_mov_b32 v2, 0")
        self.setexec(1)
        A("buffer_store_dwordx2 v[32:33], v2, s[20:23], s31 offen")
        A("s_cmp_lg_u32 s89, 0")
        e0 = self.new("e")
        A(f"s_cbranch_scc1 {e0}")
        A(f"v_mov_b32 v4, {TAG}")
        A(f"buffer_store_dword v4, v2, s[16:19], 0 offen offset:{EP_OFF}")
        self.label(e0)
        self.setexec(-1)
        self.stamp(10)
        self.label("L_cend")
        if self.dbgst: self.dbg_dump()
        if self.stamps:
            A("v_lshlrev_b32 v2, 2, v0")
            A("s_lshl_b32 s31, s2, 8")
            A(f"s_add_u32 s31, s31, {ST_OFF}")
            A("buffer_store_dword v127, v2, s[16:19], s31 offen")
        A("s_branch L_end")

    def build(self):
        A = self.A
        L = self.L
        L.append(HEADER.rstrip())
        L.append(f"; @launch grid=({NWG},1,1) block=({NW*64},1,1) lds={LDS_SIZE}")
        L.append("""; Design (generated by a script of mine; one persistent launch, 256 workgroups x 8 waves, one workgroup per CU):
;  * hand-offs between workgroups use 8-byte {value, tag} granules written / read with sc1; tag = (word found in d_ws) + 1,
;  * tail: per-workgroup (max, sum, o) record -> 16 output-projection rows per workgroup -> 112 workgroups x 4 output columns.""")
        L.append('.amdgcn_target "amdgcn-amd-amdhsa--gfx950"')
        L.append(".text")
        L.append(f".globl {NAME}_kernel")
        L.append(".p2align 8")
        L.append(f".type {NAME}_kernel,@function")
        L.append(f"{NAME}_kernel:")
        A(f"s_cmp_ge_u32 s2, {NWG}")
        A("s_cbranch_scc1 L_end")
        A("s_load_dwordx16 s[36:51], s[0:1], 0")
        A("s_load_dwordx8 s[52:59], s[0:1], 64")
        A("v_lshrrev_b32 v1, 6, v0")
        A("v_and_b32 v0, 63, v0")
        A("s_lshr_b32 s4, s2, 5")
        A("v_readfirstlane_b32 s3, v1")
        A("s_and_b32 s5, s2, 31")
        A("s_and_b32 s6, s2, 7")
        A("s_lshr_b32 s7, s2, 3")
        A("s_and_b32 s7, s7, 3")
        A("s_lshr_b32 s29, s2, 2")
        A("s_lshr_b32 s33, s5, 2")
        A("s_lshl_b32 s33, s33, 3")
        A("s_add_u32 s33, s33, s4")
        A("s_and_b32 s30, s2, 3")
        A("s_mov_b32 s28, 1")
        A("s_cmp_eq_u32 s30, 0")
        A("s_cselect_b32 s28, 0, s28")
        A("s_cmp_lt_u32 s33, 28")
        A("s_cselect_b32 s31, 2, 1")
        A("s_cmp_eq_u32 s30, 1")
        A("s_cselect_b32 s28, s31, s28")
        if self.allN: A("s_mov_b32 s28, 1")
        A(f"s_sub_u32 s89, s2, {self.OWN0}")
        A(f"s_mov_b32 s60, {hex(f2u(CEXP))}")
        if self.stamps or self.dbgst:
            A("v_mov_b32 v127, 0")
        A("s_waitcnt lgkmcnt(0)")
        A(f"s_load_dword s35, s[58:59], {EP_OFF}")
        A("s_lshl_b32 s30, s4, 25")
        A("s_add_u32 s8, s38, s30")
        A("s_addc_u32 s9, s39, 0")
        A("s_and_b32 s9, s9, 0xffff")
        A("s_mov_b32 s10, 0x2000000")
        A("s_mov_b32 s11, 0x00020000")
        A("s_add_u32 s12, s40, s30")
        A("s_addc_u32 s13, s41, 0")
        A("s_and_b32 s13, s13, 0xffff")
        A("s_mov_b32 s14, 0x2000000")
        A("s_mov_b32 s15, 0x00020000")
        self.srd(16, 58, WS_SIZE)
        A(f"s_cmp_eq_u32 s3, {NWK}")
        A("s_cbranch_scc1 L_control")
        self.worker()
        self.ffn_wave()
        self.control()
        self.label("L_end")
        A("s_endpgm")
        L.append('.section .rodata,"a"')
        L.append(".p2align 6")
        L.append(f".amdhsa_kernel {NAME}_kernel")
        L.append("  .amdhsa_next_free_vgpr 256")
        L.append("  .amdhsa_next_free_sgpr 100")
        L.append("  .amdhsa_accum_offset 256")
        L.append("  .amdhsa_group_segment_fixed_size 0")
        L.append("  .amdhsa_kernarg_size 96")
        L.append("  .amdhsa_user_sgpr_count 2")
        L.append("  .amdhsa_user_sgpr_kernarg_segment_ptr 1")
        L.append("  .amdhsa_system_sgpr_workgroup_id_x 1")
        L.append(".end_amdhsa_kernel")
        return "\n".join(L) + "\n"

if __name__ == "__main__":
    out = sys.argv[1]
    kw = json.loads(sys.argv[2]) if len(sys.argv) > 2 else {}
    open(out, "w").write(Gen(**kw).build())
```
